```python
import torch

def _softmax(x, axis=-1):
    return torch.softmax(x, dim=axis)

def _gelu(x):
    return torch.nn.functional.gelu(x, approximate='tanh')

def _silu(x):
    return torch.nn.functional.silu(x)

def _sigmoid(x):
    return torch.sigmoid(x)

def _layernorm(x, axis=-1, eps=1e-05):
    m = x.mean(dim=axis, keepdim=True)
    v = x.var(dim=axis, keepdim=True, unbiased=False)
    return (x - m) / torch.sqrt(v + eps)

def _scatter_add(tgt, idx, src, axis=0):
    return tgt.clone().index_add_(axis, idx, src)

def _segment_sum(src, seg, n):
    out = torch.zeros((n,) + src.shape[1:], dtype=src.dtype)
    return out.index_add_(0, seg, src)

def _pad(x, pw):
    flat = tuple((v for pair in reversed(pw) for v in pair))
    return torch.nn.functional.pad(x, flat)
kernel_name = 'parallel_sum__memory_aug_recurrent_mem_tr__moe_arch_mod__prompt'

def setup_inputs():

    _w = lambda a: (lambda t: t.to(torch.bfloat16) if t.is_floating_point() else t)(torch.as_tensor(a))

    def _A_setup():
        B, S, Dm = (1, 2048, 512)
        H, Dh = (32, 128)
        M, seg = (8, 32)
        seg = min(seg, S)
        S = S // seg * seg
        return {'x': _w((lambda *s: torch.randn(*s, dtype=torch.bfloat16) * 0.05)(B, S, Dm)), 'mem0': _w((lambda *s: torch.randn(*s, dtype=torch.bfloat16) * 1.6)(B, M, Dm)), 'Wq': _w((lambda *s: torch.randn(*s, dtype=torch.bfloat16) * 0.8)(Dm, H, Dh) * Dm ** (-0.5)), 'Wk': _w((lambda *s: torch.randn(*s, dtype=torch.bfloat16) * 0.8)(Dm, H, Dh) * Dm ** (-0.5)), 'Wv': _w((lambda *s: torch.randn(*s, dtype=torch.bfloat16) * 1.6)(Dm, H, Dh) * Dm ** (-0.5)), 'Wo': _w((lambda *s: torch.randn(*s, dtype=torch.bfloat16) * 1.6)(H, Dh, Dm) * (H * Dh) ** (-0.5)), 'seg_len': seg}
    _A_in = _A_setup()

    def _B_setup():
        B, S, D, F, C = (1, 2048, 512, 1792, 2)
        return {'x': _w((lambda *s: torch.randn(*s, dtype=torch.bfloat16) * 0.05)(B, S, D)), 'w_r': _w((lambda *s: torch.randn(*s, dtype=torch.bfloat16) * 0.05)(D)), 'w_gate': _w((lambda *s: torch.randn(*s, dtype=torch.bfloat16) * 0.05)(D, F)), 'w_up': _w((lambda *s: torch.randn(*s, dtype=torch.bfloat16) * 0.05)(D, F)), 'w_down': _w((lambda *s: torch.randn(*s, dtype=torch.bfloat16) * 0.05)(F, D))}
    _B_in = _B_setup()
    return {'A_x': _A_in['x'], 'A_mem0': _A_in['mem0'], 'A_Wq': _A_in['Wq'], 'A_Wk': _A_in['Wk'], 'A_Wv': _A_in['Wv'], 'A_Wo': _A_in['Wo'], 'A_seg_len': _A_in['seg_len'], 'B_x': _B_in['x'], 'B_w_r': _B_in['w_r'], 'B_w_gate': _B_in['w_gate'], 'B_w_up': _B_in['w_up'], 'B_w_down': _B_in['w_down']}

def reference(A_x, A_mem0, A_Wq, A_Wk, A_Wv, A_Wo, A_seg_len, B_x, B_w_r, B_w_gate, B_w_up, B_w_down):

    def _A_ref(x, mem0, Wq, Wk, Wv, Wo, seg_len):
        B, S, Dm = x.shape
        H, Dh = (Wq.shape[1], Wq.shape[2])
        M = mem0.shape[1]
        scale = Dh ** (-0.5)
        n_seg = S // seg_len
        L = M + seg_len
        idx = torch.arange(L)
        mask = (idx[:, None] < M) | (idx[:, None] >= idx[None, :])
        mem = mem0
        outs = []
        for s in range(n_seg):
            xs = x[:, s * seg_len:(s + 1) * seg_len, :].clone()
            h = torch.concatenate([mem, xs], axis=1)
            q = torch.einsum('btd,dhe->bhte', h, Wq)
            k = torch.einsum('btd,dhe->bhte', h, Wk)
            v = torch.einsum('btd,dhe->bhte', h, Wv)
            scores = torch.einsum('bhqe,bhke->bhqk', q, k) * scale
            scores = torch.where(mask[None, None], scores, -1000000000.0)
            p = _softmax(scores, axis=-1)
            o = torch.einsum('bhqk,bhke->bhqe', p, v)
            o = torch.einsum('bhte,hed->btd', o, Wo)
            mem = o[:, :M, :].clone()
            outs.append(o[:, M:, :])
        return torch.concatenate(outs, axis=1)

    def _B_ref(x, w_r, w_gate, w_up, w_down):
        B, S, D = x.shape
        C = 2
        r = x @ w_r
        idx = torch.argsort(-r, axis=-1)[:, :C]
        idx_e = (lambda x, n, axis: torch.repeat_interleave(x, n, dim=axis))(idx.reshape(B, C, 1), D, axis=2)
        x_sel = (lambda x, i, axis: torch.take_along_dim(x, i, dim=axis))(x, idx_e, axis=1)
        g = _silu(x_sel @ w_gate)
        u = x_sel @ w_up
        y = g * u @ w_down
        r_sel = _sigmoid((lambda x, i, axis: torch.take_along_dim(x, i, dim=axis))(r, idx, axis=1))
        y = y * r_sel.reshape(B, C, 1)
        b_off = (torch.arange(B) * S).reshape(B, 1)
        flat_idx = (idx + b_off).reshape(B * C)
        zero = (x * 0.0).reshape(B * S, D)
        upd = _scatter_add(zero, flat_idx, y.reshape(B * C, D), axis=0)
        return x + upd.reshape(B, S, D)
    x = A_x
    xn = _layernorm(x, axis=-1)
    return x + _A_ref(xn, A_mem0, A_Wq, A_Wk, A_Wv, A_Wo, A_seg_len) + _B_ref(xn, B_w_r, B_w_gate, B_w_up, B_w_down)
```

```python
import re

REG_RE = re.compile(r'^(-|\|)?(abs\()?([vas])(\d+|\[(\d+):(\d+)\])\)?\|?$')
TRANS = ('v_exp_f32','v_log_f32','v_rcp_f32','v_rsq_f32','v_sqrt_f32','v_sin_f32','v_cos_f32','v_rcp_iflag_f32')

def regs_of(tok):
    tok = tok.strip()
    if tok in ('vcc',): return {('s',106),('s',107)}
    if tok == 'vcc_lo': return {('s',106)}
    if tok == 'vcc_hi': return {('s',107)}
    if tok == 'exec': return {('s',126),('s',127)}
    if tok == 'exec_lo': return {('s',126)}
    if tok == 'exec_hi': return {('s',127)}
    if tok == 'm0': return {('s',124)}
    m = REG_RE.match(tok)
    if not m: return set()
    f = m.group(3)
    if m.group(5) is not None:
        return {(f,i) for i in range(int(m.group(5)), int(m.group(6))+1)}
    return {(f,int(m.group(4)))}

class Ins:
    __slots__=('text','mn','ops','mods','kind','wr','rd','label','target','states','isdpp','A','B','C','D','wide_data','trans','passes')
    def __init__(self, text):
        self.text=text; self.label=None; self.target=None; self.kind='other'; self.wr=set(); self.rd=set()
        self.states=1; self.isdpp=False; self.A=self.B=self.C=self.D=set(); self.wide_data=set(); self.trans=False; self.passes=0
        t=text.split(';')[0].strip()
        if t.endswith(':'):
            self.kind='label'; self.label=t[:-1]; self.states=0; self.mn=''; return
        if t.startswith('.') or t=='':
            self.kind='dir'; self.states=0; self.mn=''; return
        parts=t.split(None,1); mn=parts[0]; self.mn=mn
        rest=parts[1] if len(parts)>1 else ''
        ops=[]; cur=''; d=0
        for ch in rest:
            if ch in '[(': d+=1
            if ch in '])': d-=1
            if ch==',' and d==0: ops.append(cur.strip()); cur=''
            else: cur+=ch
        if cur.strip(): ops.append(cur.strip())
        mods=''
        if ops:
            last=ops[-1].split(None,1)
            if len(last)>1 and not ops[-1].startswith('hwreg') and not mn.startswith('s_waitcnt'):
                ops[-1]=last[0]; mods=last[1]
        self.ops=ops; self.mods=mods
        R=lambda i: regs_of(ops[i]) if i<len(ops) else set()
        allsrc=lambda k: set().union(*[regs_of(o) for o in ops[k:]]) if len(ops)>k else set()
        if mn.startswith('v_mfma'):
            self.kind='mfma'; self.D=R(0); self.A=R(1); self.B=R(2); self.C=R(3); self.wr=set(self.D); self.rd=self.A|self.B|self.C
            self.passes=8 if '32x32' in mn else 4
        elif mn.startswith('v_smfmac'):
            self.kind='mfma'; self.D=R(0); self.A=R(1); self.B=R(2)|R(3); self.C=R(0); self.wr=set(self.D); self.rd=self.A|self.B|self.C
            self.passes=8 if '32x32' in mn else 4
        elif mn.startswith('v_'):
            self.kind='valu'
            base=mn.replace('_e32','').replace('_e64','').replace('_dpp','').replace('_sdwa','')
            self.trans = base in TRANS
            self.isdpp = mn.endswith('_dpp') or 'quad_perm' in mods or 'row_' in mods
            if base.startswith('v_permlane') or base=='v_swap_b32':
                self.wr=R(0)|R(1); self.rd=R(0)|R(1)
            elif base.startswith('v_cmpx'):
                self.wr=R(0)|regs_of('exec'); self.rd=allsrc(1)
            elif base in ('v_add_co_u32','v_sub_co_u32','v_subrev_co_u32','v_addc_co_u32','v_subb_co_u32','v_mad_u64_u32','v_div_scale_f32'):
                self.wr=R(0)|R(1); self.rd=allsrc(2)
            else:
                self.wr=R(0); self.rd=allsrc(1)
                if base in ('v_fmac_f32','v_dot2c_f32_bf16','v_pk_fmac_f16','v_writelane_b32') or self.isdpp or mn.endswith('_sdwa'):
                    self.rd=self.rd|R(0)
        elif mn.startswith('ds_'):
            self.kind='ds'
            if mn.startswith('ds_read') or mn.startswith('ds_bpermute') or mn.startswith('ds_permute') or mn.startswith('ds_swizzle') or '_rtn' in mn:
                self.wr=R(0); self.rd=allsrc(1)
            else: self.rd=allsrc(0)
        elif mn.startswith('global_') or mn.startswith('buffer_') or mn.startswith('flat_'):
            self.kind='vmem'
            if mn.startswith('global_load_lds') or (mn.startswith('buffer_load') and re.search(r'\blds\b',mods)):
                self.rd=allsrc(0)|regs_of('m0'); self.kind='vmem_lds'
            elif '_load' in mn:
                self.wr=R(0); self.rd=allsrc(1)
            elif '_store' in mn:
                self.rd=allsrc(0)
                if mn.endswith('x3') or mn.endswith('x4'):
                    self.wide_data = R(1) if mn.startswith('global') or mn.startswith('flat') else R(0)
            elif '_atomic' in mn:
                if re.search(r'\bsc0\b',mods) and mn.startswith('global'):
                    self.wr=R(0); self.rd=allsrc(1)
                else: self.rd=allsrc(0)
        elif mn.startswith('s_'):
            self.kind='salu'
            if mn=='s_nop': self.states=int(ops[0],0)+1; self.kind='nop'
            elif mn.startswith('s_cbranch') or mn=='s_branch':
                self.kind='branch'; self.target=ops[0]
            elif mn=='s_endpgm': self.kind='end'
            elif mn.startswith('s_setpc') : self.kind='end'
            elif mn.startswith('s_cmp') or mn.startswith('s_bitcmp') or mn in ('s_waitcnt','s_barrier','s_sleep','s_setprio'):
                self.rd=allsrc(0) if mn!='s_waitcnt' else set()
            elif mn.startswith('s_load') or mn.startswith('s_mem') or mn.startswith('s_buffer_load'):
                self.kind='smem'; self.wr=R(0); self.rd=allsrc(1)
            else:
                self.wr=R(0); self.rd=allsrc(1)
                if 'saveexec' in mn: self.wr=self.wr|regs_of('exec')

EXEC={('s',126),('s',127)}
def vec(rs): return {r for r in rs if r[0]!='s'}
def sca(rs): return {r for r in rs if r[0]=='s'}

def need(p, c):
    n=0
    if p.kind=='valu':
        vw=vec(p.wr); sw=sca(p.wr)
        if c.kind=='mfma':
            if vw & c.rd: n=max(n,2)
            if sw & EXEC: n=max(n,4)
        if c.kind=='valu':
            if p.trans and not c.trans and (vw & c.rd): n=max(n,1)
            if p.trans and c.trans and (vw & c.rd): n=max(n,1)
            if c.mn.startswith('v_permlane') and (vw & c.rd): n=max(n,2)
            if c.isdpp and (vw & c.rd): n=max(n,2)
            if (c.mn.startswith('v_readlane') or c.mn.startswith('v_readfirstlane')) and (vw & c.rd): n=max(n,1)
            if (sw-EXEC) & c.rd:
                n=max(n,4 if (c.mn.startswith('v_readlane') or c.mn.startswith('v_writelane')) else 2)
            if sw & EXEC:
                if c.isdpp: n=max(n,5)
                if c.mn.startswith('v_permlane') or c.mn.startswith('v_read') or c.mn.startswith('v_writelane'): n=max(n,4)
                if EXEC & c.rd: n=max(n,2)
            if (p.mn.endswith('_sdwa') or 'op_sel' in p.mods) and (vw & (c.rd|c.wr)): n=max(n,1)
        if p.mn.startswith('v_dot') and c.kind in ('valu','mfma','vmem','vmem_lds','ds'):
            if c.mn==p.mn:
                ab=set().union(*[regs_of(o) for o in c.ops[1:3]])
                if vw & ab: n=max(n,3)
            elif vw & (c.rd|c.wr): n=max(n,3)
        if c.kind in ('vmem','vmem_lds','ds'):
            if (sw-EXEC) & c.rd: n=max(n,5)
            if p.trans and (vw & c.rd): n=max(n,1)
    elif p.kind=='mfma':
        big={4:8,8:12}[p.passes]; ovl={4:6,8:10}[p.passes]; war={4:3,8:7}[p.passes]
        if c.kind=='mfma':
            if p.D & (c.A|c.B): n=max(n,big)
            if p.D & c.C:
                if not (p.D==c.C and p.mn==c.mn): n=max(n,ovl)
            elif p.D & c.D: n=max(n,ovl)
        elif c.kind in ('valu','ds','vmem','vmem_lds'):
            if p.D & (c.rd|c.wr): n=max(n,big)
            if c.kind=='valu' and (p.C & c.wr): n=max(n,war)
    elif p.kind=='salu':
        if ('s',124) in p.wr and c.kind=='vmem_lds': n=max(n,1)
    if p.wide_data and (p.wide_data & c.wr):
        n=max(n,2 if c.kind in ('valu','mfma') else 1)
    return n

class Prog:
    def __init__(self): self.lines=[]
    def __call__(self, text):
        for l in text.split('\n'):
            l=l.strip()
            if l: self.lines.append(l)
    def nops(self, n):
        while n>0:
            k=min(n,16); self(f's_nop {k-1}'); n-=k
    def fix(self, verbose=False):
        ins=[Ins(l) for l in self.lines]
        inserted=0
        changed=True
        while changed:
            changed=False
            lab={x.label:i for i,x in enumerate(ins) if x.kind=='label'}
            add={}
            for i,p in enumerate(ins):
                if p.kind not in ('valu','mfma','salu','vmem'): continue
                if p.kind=='salu' and ('s',124) not in p.wr: continue
                if p.kind=='vmem' and not p.wide_data: continue
                lim=12 if p.kind=='mfma' else 5
                stack=[(i+1,0)]; seen=set()
                while stack:
                    j,dist=stack.pop()
                    while j<len(ins) and dist<lim:
                        if (j,dist) in seen: break
                        seen.add((j,dist))
                        c=ins[j]
                        if c.kind in ('label','dir'): j+=1; continue
                        if c.kind=='end': break
                        n=need(p,c)
                        if n>dist:
                            add[j]=max(add.get(j,0), n-dist)
                        dist+=c.states
                        if c.kind=='branch':
                            if c.target in lab: stack.append((lab[c.target],dist))
                            if c.mn=='s_branch': break
                        j+=1
            if add:
                j=min(add)
                last=-100; new=[]; todo={}
                for j in sorted(add):
                    if j-last>24: todo[j]=add[j]; last=j
                for k,x in enumerate(ins):
                    if k in todo:
                        new.append(Ins(f's_nop {todo[k]-1}')); inserted+=todo[k]
                        if verbose: print('pad',todo[k],'before',x.text)
                    new.append(x)
                ins=new; changed=True
        self.inserted=inserted
        return '\n'.join(x.text for x in ins)+'\n'

def kd(name, vgpr=512, sgpr=102, accum=256):
    return f'''.amdhsa_kernel {name}
  .amdhsa_next_free_vgpr {vgpr}
  .amdhsa_next_free_sgpr {sgpr}
  .amdhsa_accum_offset {accum}
  .amdhsa_group_segment_fixed_size 0
  .amdhsa_kernarg_size 120
  .amdhsa_user_sgpr_count 2
  .amdhsa_user_sgpr_kernarg_segment_ptr 1
  .amdhsa_system_sgpr_workgroup_id_x 1
  .amdhsa_float_denorm_mode_32 3
.end_amdhsa_kernel
'''

def lin(p, dst, fn, tmp, src='v0', nbits=8):
    c0=fn(0)
    masks=[fn(1<<i)^c0 for i in range(nbits)]
    for t in range(1<<nbits):
        v=c0
        for i in range(nbits):
            if t>>i&1: v^=masks[i]
        assert v==fn(t), ('not linear',t,v,fn(t))
    p(f'v_mov_b32 {dst}, {c0:#x}')
    for i,m in enumerate(masks):
        if m:
            p(f'v_bfe_i32 {tmp}, {src}, {i}, 1')
            p(f'v_and_b32 {tmp}, {m:#x}, {tmp}')
            p(f'v_xor_b32 {dst}, {dst}, {tmp}')
```

```python
import sys
from common import *
from k_prep import gen_prep
from k_qkv import gen_qkv
def build(kernels, out):
    head=open(f'cdna_kernels/{NAME}.s.ref').read().split('; Override launch')[0]
    s=head
    for (name,grid,lds,gen) in kernels:
        s+=f'; @launch kernel={name} grid=({grid},1,1) block=(256,1,1) lds={lds}\n'
    s+='.amdgcn_target "amdgcn-amd-amdhsa--gfx950"\n.text\n'
    done=[]
    for (name,grid,lds,gen) in kernels:
        if name in done: continue
        done.append(name)
        p=Prog(); gen(p)
        s+=f'.globl {name}\n.type {name},@function\n'+p.fix()
        print(name,'lines',len(p.lines),'pads',p.inserted,file=sys.stderr)
    s+='.section .rodata,"a"\n'
    for name in done: s+='.p2align 6\n'+kd(name)
    open(out,'w').write(s)
if __name__=='__main__':
    ks=[('prep_kernel',128,1024,gen_prep),('qkv_kernel',256,163840,gen_qkv)]
    build(ks, sys.argv[1] if len(sys.argv)>1 else f'cdna_kernels/{NAME}.s')
```

```python
from asmlib import *
import math
NAME='parallel_sum__memory_aug_recurrent_mem_tr__moe_arch_mod__prompt'
KA_X,KA_MEM0,KA_WQ,KA_WK,KA_WV,KA_WO,KA_SEG,KA_BX,KA_WR,KA_WG,KA_WU,KA_WD,KA_OUT,KA_DBG,KA_WS = [8*i for i in range(15)]
WS_XNF   = 0x0
WS_KEY   = 0x200000
WS_RINGA = 0x300000
WS_RINGB = 0x380000
WS_MOE_H = 0x390000
WS_MOE_Y = 0x398000
WS_FLAGS = 0x3A0000
WS_QKV   = 0x1000000
WS_KVM   = 0x4000000
WS_OF    = 0x5000000
QSCALE = math.log2(math.e)/math.sqrt(128.0)
import struct
def f32(x): return '0x%08x'%struct.unpack('<I',struct.pack('<f',x))[0]

def V(i,n=1): return f'v{i}' if n==1 else f'v[{i}:{i+n-1}]'
def A(i,n=1): return f'a{i}' if n==1 else f'a[{i}:{i+n-1}]'
def S(i,n=1): return f's{i}' if n==1 else f's[{i}:{i+n-1}]'
def R(i,n=1):
    if i>=256: return A(i-256,n)
    assert i+n<=256
    return V(i,n)

def xgroup(p, op, x, t):
    p(f'v_mov_b32 {t}, {x}')
    p(f'v_permlane32_swap_b32 {x}, {t}')
    p(f'{op} {x}, {x}, {t}')
    p(f'v_mov_b32 {t}, {x}')
    p(f'v_permlane16_swap_b32 {x}, {t}')
    p(f'{op} {x}, {x}, {t}')

def bit(x,i): return (x>>i)&1
PATS={
 'D' : dict(f=lambda r: bit(r,0)|bit(r,1)<<1|bit(r,3)<<2, rl=lambda r,gb: r+8*gb),
 'S' : dict(f=lambda r: bit(r,0)|bit(r,2)<<1|bit(r,4)<<2, rl=lambda r,gb: 16*(r%2)+r//2+4*gb),
 'So': dict(f=lambda r: bit(r,1)|bit(r,2)<<1|bit(r,4)<<2, rl=lambda r,gb: 16*(r%2)+4*(r//2)+8*(gb//2)+2*(gb%2)),
}
def dma_src_fn(pat,stride):
    f=PATS[pat]['f']
    def fn(t):
        w=t>>6; l=t&63; rho=32*w+(l>>4); y=(l&15)>>1
        return rho*stride + ((y^f(l>>4))*32) + (l&1)*16
    return fn
def rd_fn(pat):
    f=PATS[pat]['f']; rl=PATS[pat]['rl']
    def fn(t):
        w=t>>6; l=t&63; r=(l&15)>>2; gb=l>>4; rho=rl(r,gb)
        return rho*256 + (((2*w)^f(rho))*32) + (l&3)*8
    return fn

def load_chunks(p, chunks, s_w8k, vt, tag, pre_hook=None):
    srcreg={}; rdreg={}
    n=0
    for ch in chunks:
        k=(ch['pat'],ch['stride'])
        if k not in srcreg:
            srcreg[k]=V(vt+n); lin(p,srcreg[k],dma_src_fn(*k),V(vt+7)); n+=1
    for ch in chunks:
        k=ch['pat']
        if k not in rdreg:
            rdreg[k]=V(vt+n); lin(p,rdreg[k],rd_fn(k),V(vt+7)); n+=1
    assert n<=4
    t0,t1,t2=V(vt+4),V(vt+5),V(vt+6)
    def issue(i):
        ch=chunks[i]; f=PATS[ch['pat']]['f']; buf=i%4
        for jj in range(8):
            x=f(4*jj)*32
            p(f's_add_u32 m0, {s_w8k}, {buf*32768+jj*1024:#x}')
            p(f'v_xor_b32 {t0}, {x:#x}, {srcreg[(ch["pat"],ch["stride"])]}')
            p(f'v_add_u32 {t0}, {(ch["row0"]+4*jj)*ch["stride"]+ch.get("coff",0):#x}, {t0}')
            p(f'global_load_lds_dwordx4 {t0}, {ch["sbase"]}')
    N=len(chunks)
    for i in range(min(3,N)): issue(i)
    if pre_hook: pre_hook()
    for i in range(N):
        ch=chunks[i]; buf=i%4
        inflight=min(N-1-i,2)
        p(f's_waitcnt vmcnt({8*inflight})')
        p('s_barrier')
        if i+3<N: issue(i+3)
        hi=(buf//2)*65536
        p(f'v_add_u32 {t1}, {hi:#x}, {rdreg[ch["pat"]]}')
        p(f'v_xor_b32 {t2}, 32, {t1}')
        cnt=0
        for (dst,rho_s,b) in ch['reads']:
            assert PATS[ch['pat']]['f'](rho_s)==0
            p(f'ds_read_b64_tr_b16 {dst}, {t2 if b else t1} offset:{rho_s*256+(buf%2)*32768}')
        p('s_waitcnt lgkmcnt(0)')
        if 'post' in ch: ch['post']()
    p('s_barrier')
```

```python
from common import *
def attn_setup(p):
    lin(p,'v1',lambda t:(t&63)*16,'v3'); lin(p,'v2',lambda t:(t&63)*8+4096,'v3')
    p('v_and_b32 v3, 15, v0\nv_bfe_u32 v12, v0, 4, 2\nv_lshlrev_b32 v12, 2, v12')
    for r in range(4):
        p(f'v_add_u32 v13, {r}, v12\nv_cmp_gt_u32 {S(60+2*r,2)}, v13, v3')
    for r in range(4): p(f'v_mov_b32 {V(4+r)}, 0x3f803f80\nv_mov_b32 {V(8+r)}, 0')
    p('v_mov_b32 v3, 0xff800000')
KF=16; QF=48; VF=80; KM=112; VM=128; X0=136; X1=140; MT=144; PX=148; LS=152; O=156; OP=188; MX=204
def attn_loads_qkv(p, sb, ld=''):
    for part,reg in ((0,KF),(2,QF),(1,VF)):
        for half in range(2):
            p(f'v_add_u32 v13, {part*8192+half*4096}, v1')
            for i in range(4): p(f'global_load_dwordx4 {V(reg+16*half+4*i,4)}, v13, {sb} offset:{1024*i} {ld}')
def attn_loads_mem(p, sb, ld=''):
    for i in range(4): p(f'global_load_dwordx4 {V(KM+4*i,4)}, v1, {sb} offset:{1024*i} {ld}')
    for i in range(4): p(f'global_load_dwordx2 {V(VM+2*i,2)}, v2, {sb} offset:{512*i} {ld}')
def attn_compute(p, so, st=''):
    def mf(d,a,b,c=None): p(f'v_mfma_f32_16x16x32_bf16 {V(d,4)}, {V(a,4)}, {V(b,4)}, {V(c,4) if c is not None else 0}')
    def mf16(d,a,b,c): p(f'v_mfma_f32_16x16x16_bf16 {V(d,4)}, {V(a,2)}, {V(b,2)}, {V(c,4)}')
    for qt in range(2):
        q=QF+16*qt
        for s in range(4):
            mf(X0,KF+4*s,q+4*s,None if s==0 else X0)
            if qt: mf(X1,KF+16+4*s,q+4*s,None if s==0 else X1)
            mf(MT,KM+4*s,q+4*s,None if s==0 else MT)
        D=X1 if qt else X0
        for r in range(4): p(f'v_cndmask_b32 {V(D+r)}, {V(D+r)}, v3, {S(60+2*r,2)}')
        p(f'v_max3_f32 {V(MX)}, {V(X0)}, {V(X0+1)}, {V(X0+2)}\nv_max3_f32 {V(MX+1)}, {V(X0+3)}, {V(MT)}, {V(MT+1)}')
        if qt: p(f'v_max3_f32 {V(MX)}, {V(MX)}, {V(X1)}, {V(X1+1)}\nv_max3_f32 {V(MX+1)}, {V(MX+1)}, {V(X1+2)}, {V(X1+3)}')
        p(f'v_max_f32 {V(MX)}, {V(MX)}, {V(MX+1)}')
        xgroup(p,'v_max_f32',V(MX),V(MX+1))
        regs=[X0+i for i in range(8 if qt else 4)]+[MT,MT+1]
        for r in regs: p(f'v_sub_f32 {V(r)}, {V(r)}, {V(MX)}')
        for r in regs: p(f'v_exp_f32 {V(r)}, {V(r)}')
        for i in range(4):
            if qt or i<2: p(f'v_cvt_pk_bf16_f32 {V(PX+i)}, {V(X0+2*i)}, {V(X0+2*i+1)}')
            else: p(f'v_mov_b32 {V(PX+i)}, 0')
        p(f'v_cvt_pk_bf16_f32 v8, {V(MT)}, {V(MT+1)}\nv_cvt_pk_bf16_f32 v11, {V(MT)}, {V(MT+1)}')
        mf(LS,4,PX)
        for et in range(8): mf(O+4*et,VF+4*et,PX)
        mf16(LS,4,8,LS)
        for et in range(8): mf16(O+4*et,VM+2*(et//2),8+2*(et%2),O+4*et)
        p(f'v_rcp_f32 {V(LS)}, {V(LS)}')
        if qt: p('v_add_u32 v13, 0x20000, v1')
        for s in range(4):
            for i in range(8): p(f'v_mul_f32 {V(O+8*s+i)}, {V(O+8*s+i)}, {V(LS)}')
            for i in range(4): p(f'v_cvt_pk_bf16_f32 {V(OP+4*s+i)}, {V(O+8*s+2*i)}, {V(O+8*s+2*i+1)}')
            p(f'global_store_dwordx4 {"v13" if qt else "v1"}, {V(OP+4*s,4)}, {so} offset:{1024*s} {st}')
def gen_attn(p):
    p('.p2align 8\nattn_kernel:')
    p('s_cmp_ge_u32 s2, 256\ns_cbranch_scc1 L_attn_exit')
    p(f's_load_dwordx2 s[4:5], s[0:1], {KA_WS}')
    p('v_lshrrev_b32 v1, 6, v0\nv_readfirstlane_b32 s14, v1')
    attn_setup(p)
    p('s_lshl_b32 s12, s2, 2\ns_add_u32 s12, s12, s14')
    p('s_waitcnt lgkmcnt(0)')
    p('L_attn_loop:')
    p(f's_mul_i32 s13, s12, 24576\ns_add_u32 s13, s13, {WS_QKV:#x}\ns_add_u32 s6, s4, s13\ns_addc_u32 s7, s5, 0')
    p(f's_lshl_b32 s13, s12, 13\ns_add_u32 s13, s13, {WS_KVM:#x}\ns_add_u32 s8, s4, s13\ns_addc_u32 s9, s5, 0')
    p(f's_lshr_b32 s13, s12, 5\ns_lshl_b32 s13, s13, 18\ns_and_b32 s3, s12, 31\ns_lshl_b32 s3, s3, 12\ns_add_u32 s13, s13, s3\ns_add_u32 s13, s13, {WS_OF:#x}\ns_add_u32 s10, s4, s13\ns_addc_u32 s11, s5, 0')
    attn_loads_qkv(p,'s[6:7]'); attn_loads_mem(p,'s[8:9]')
    p('s_waitcnt vmcnt(0)')
    attn_compute(p,'s[10:11]')
    p('s_add_u32 s12, s12, 1024\ns_cmp_lt_u32 s12, 2048\ns_cbranch_scc1 L_attn_loop')
    p('L_attn_exit:\ns_endpgm')
```

```python
from common import *
def wave_max(p,x,t):
    for n in (8,4,2,1): p(f'v_max_u32_dpp {x}, {x}, {x} row_ror:{n} row_mask:0xf bank_mask:0xf')
    xgroup(p,'v_max_u32',x,t)
def top2(p, sws, ld=''):
    p(f'v_lshlrev_b32 v1, 5, v0\nv_add_u32 v1, {WS_KEY:#x}, v1')
    p(f'global_load_dwordx4 v[4:7], v1, {sws} {ld}\nglobal_load_dwordx4 v[8:11], v1, {sws} offset:16 {ld}')
    p('v_lshrrev_b32 v2, 6, v0\nv_lshlrev_b32 v2, 2, v2\nv_mov_b32 v3, 0')
    p('s_waitcnt vmcnt(0)')
    for rnd in range(2):
        p('v_max3_u32 v12, v4, v5, v6\nv_max3_u32 v13, v7, v8, v9\nv_max3_u32 v12, v12, v10, v11\nv_max_u32 v12, v12, v13')
        wave_max(p,'v12','v13')
        p(f'ds_write_b32 v2, v12 offset:{16*rnd}\ns_waitcnt lgkmcnt(0)\ns_barrier\nds_read_b128 v[12:15], v3 offset:{16*rnd}\ns_waitcnt lgkmcnt(0)')
        p(f'v_max3_u32 v12, v12, v13, v14\nv_max_u32 v12, v12, v15\nv_readfirstlane_b32 s{46+rnd}, v12')
        if rnd==0:
            for r in range(4,12): p(f'v_cmp_ne_u32 vcc, s46, v{r}\nv_cndmask_b32 v{r}, 0, v{r}, vcc')
XV=1024
PART=16384
def gemv(p, mats, stride, nrows_per_thread, batch):
    p(f'v_lshrrev_b32 v1, 3, v0\nv_mul_u32_u24 v2, {stride}, v1\nv_and_b32 v3, 7, v0\nv_lshlrev_b32 v3, 4, v3\nv_add_u32 v2, v2, v3')
    p(f'v_lshlrev_b32 v1, 3, v1')
    for i in range(16*len(mats)): p(f'v_mov_b32 {V(16+i)}, 0')
    p('s_mov_b32 s20, 0xffff0000')
    for b0 in range(0,nrows_per_thread,batch):
        n=0
        for mi,m in enumerate(mats):
            for i in range(b0,b0+batch):
                p(f'v_add_u32 v4, {i*32*stride}, v2\nglobal_load_dwordx4 {V(64+4*n,4)}, v4, {m}'); n+=1
        tot=n; n=0
        for mi,m in enumerate(mats):
            for i in range(b0,b0+batch):
                p(f'ds_read_b64 v[6:7], v1 offset:{XV+i*256}')
                p(f's_waitcnt vmcnt({tot-n-1}) lgkmcnt(0)')
                for d in range(4):
                    w=V(64+4*n+d)
                    p(f'v_lshlrev_b32 v8, 16, {w}\nv_and_b32 v9, s20, {w}')
                    a=16+16*mi+2*d
                    p(f'v_fmac_f32 {V(a)}, v6, v8\nv_fmac_f32 {V(a+1)}, v6, v9\nv_fmac_f32 {V(a+8)}, v7, v8\nv_fmac_f32 {V(a+9)}, v7, v9')
                n+=1
    lin(p,'v4',lambda t:(t>>3)*512+(t&7)*32,'v5')
    for mi in range(len(mats)):
        for tok in range(2):
            for hh in range(2):
                p(f'ds_write_b128 v4, {V(16+16*mi+8*tok+4*hh,4)} offset:{PART+mi*16384+tok*256+hh*16}')
    p('s_waitcnt lgkmcnt(0)\ns_barrier')
    p('v_and_b32 v4, 127, v0\nv_lshlrev_b32 v4, 2, v4')
    for mi in range(len(mats)):
        for rg in range(32): p(f'ds_read_b32 {V(64+rg)}, v4 offset:{PART+mi*16384+rg*512}')
        p('s_waitcnt lgkmcnt(0)')
        p(f'v_add_f32 {V(10+mi)}, v64, v65')
        for rg in range(2,32): p(f'v_add_f32 {V(10+mi)}, {V(10+mi)}, {V(64+rg)}')
def bfr(p,x): p(f'v_cvt_pk_bf16_f32 {x}, {x}, {x}\nv_and_b32 {x}, s20, {x}')
def sigmoid(p,d,x):
    p(f'v_mul_f32 {d}, {f32(-math.log2(math.e))}, {x}\nv_exp_f32 {d}, {d}\nv_add_f32 {d}, 1.0, {d}\nv_rcp_f32 {d}, {d}')
def moe_a(p, sidx, ld='', st=''):
    p(f's_load_dwordx2 s[6:7], s[0:1], {KA_WG}\ns_load_dwordx2 s[8:9], s[0:1], {KA_WU}')
    top2(p,'s[4:5]',ld)
    p('s_and_b32 s48, s46, 0xffff\ns_sub_u32 s48, 0xffff, s48\ns_and_b32 s49, s47, 0xffff\ns_sub_u32 s49, 0xffff, s49')
    p('s_and_b32 s48, s48, 2047\ns_and_b32 s49, s49, 2047')
    p('v_mov_b32 v1, s48\nv_mov_b32 v2, s49\nv_and_b32 v3, 64, v0\nv_cmp_eq_u32 vcc, 0, v3\nv_cndmask_b32 v1, v2, v1, vcc')
    p('v_lshrrev_b32 v2, 4, v1\nv_lshlrev_b32 v2, 14, v2\nv_and_b32 v1, 15, v1\nv_lshlrev_b32 v1, 4, v1\nv_add_u32 v1, v1, v2')
    p('v_and_b32 v2, 63, v0\nv_lshlrev_b32 v2, 8, v2\nv_add_u32 v1, v1, v2')
    p(f'global_load_dwordx4 v[4:7], v1, s[4:5] {ld}')
    lin(p,'v2',lambda t:(t&63)*64+((t>>6)&1)*4,'v3')
    p('s_mov_b32 s20, 0xffff0000\ns_waitcnt vmcnt(0)')
    for d in range(4):
        p(f'v_lshlrev_b32 v8, 16, v{4+d}\nv_and_b32 v9, s20, v{4+d}\nds_write_b32 v2, v8 offset:{XV+16*d}\nds_write_b32 v2, v9 offset:{XV+16*d+8}')
    p('s_waitcnt lgkmcnt(0)\ns_barrier')
    p(f's_lshl_b32 s3, {sidx}, 7\ns_add_u32 s6, s6, s3\ns_addc_u32 s7, s7, 0\ns_add_u32 s8, s8, s3\ns_addc_u32 s9, s9, 0')
    gemv(p,['s[6:7]','s[8:9]'],3584,16,16)
    bfr(p,'v10'); bfr(p,'v11')
    sigmoid(p,'v12','v10'); p('v_mul_f32 v10, v10, v12'); bfr(p,'v10')
    p('v_mul_f32 v10, v10, v11'); bfr(p,'v10')
    lin(p,'v4',lambda t:(t&63)*8+((t>>6)&1)*4+WS_MOE_H,'v5')
    p(f's_lshl_b32 s3, {sidx}, 9\nv_add_u32 v4, s3, v4')
    p(f'global_store_dword v4, v10, s[4:5] {st}')
def moe_b(p, sidx, ld='', st=''):
    p(f's_load_dwordx2 s[6:7], s[0:1], {KA_WD}')
    top2(p,'s[4:5]',ld)
    p(f'v_lshlrev_b32 v1, 4, v0\nv_add_u32 v2, {WS_MOE_H:#x}, v1')
    for i in range(4):
        p(f'v_add_u32 v3, {4096*i}, v2\nglobal_load_dwordx4 {V(16+4*i,4)}, v3, s[4:5] {ld}')
    p('s_waitcnt vmcnt(0)')
    for i in range(4): p(f'ds_write_b128 v1, {V(16+4*i,4)} offset:{XV+4096*i}')
    p('s_waitcnt lgkmcnt(0)\ns_barrier')
    p(f's_lshl_b32 s3, {sidx}, 7\ns_add_u32 s6, s6, s3\ns_addc_u32 s7, s7, 0')
    global PART
    old=PART; PART=32768
    gemv(p,['s[6:7]'],1024,56,28)
    PART=old
    bfr(p,'v10')
    p('v_mov_b32 v1, s46\nv_mov_b32 v2, s47\nv_and_b32 v3, 64, v0\nv_cmp_eq_u32 vcc, 0, v3\nv_cndmask_b32 v1, v2, v1, vcc')
    p('v_ashrrev_i32 v2, 31, v1\nv_not_b32 v2, v2\nv_or_b32 v2, 0x80000000, v2\nv_xor_b32 v2, v1, v2\nv_and_b32 v2, s20, v2')
    sigmoid(p,'v12','v2'); bfr(p,'v12')
    p('v_mul_f32 v10, v10, v12'); bfr(p,'v10')
    lin(p,'v4',lambda t:(t&63)*4+((t>>6)&1)*2048+WS_MOE_Y,'v5')
    p(f's_lshl_b32 s3, {sidx}, 8\nv_add_u32 v4, s3, v4')
    p(f'global_store_dword v4, v10, s[4:5] {st}')
    p('v_and_b32 v1, 0xffff, v1\nv_sub_u32 v1, 0xffff, v1')
    lin(p,'v4',lambda t:((t>>6)&1)*4+WS_MOE_Y+4096,'v5')
    p(f'global_store_dword v4, v1, s[4:5] {st}')
def gen_moea(p):
    p('.p2align 8\nmoea_kernel:\ns_cmp_ge_u32 s2, 28\ns_cbranch_scc1 L_moea_exit')
    p(f's_load_dwordx2 s[4:5], s[0:1], {KA_WS}\ns_waitcnt lgkmcnt(0)')
    moe_a(p,'s2'); p('L_moea_exit:\ns_endpgm')
def gen_moeb(p):
    p('.p2align 8\nmoeb_kernel:\ns_cmp_ge_u32 s2, 8\ns_cbranch_scc1 L_moeb_exit')
    p(f's_load_dwordx2 s[4:5], s[0:1], {KA_WS}\ns_waitcnt lgkmcnt(0)')
    moe_b(p,'s2'); p('L_moeb_exit:\ns_endpgm')
```

```python
from common import *
def out_load_wo(p, swo, s_w32k):
    lin(p,'v1',lambda t:((t>>6)*1024+((t&63)>>2))*1024+((((t>>1)&1)^((t>>4)&1))*32)+(t&1)*16,'v4')
    def rdf(t):
        w=t>>6; l=t&63; r=(l&15)>>2; gb=l>>4; row=4*gb+r
        return w*32768+row*64+((gb&1)*32)+(l&3)*8
    lin(p,'v2',rdf,'v4'); p('v_xor_b32 v3, 32, v2')
    for rnd in range(2):
        for jj in range(32):
            p(f's_add_u32 m0, {s_w32k}, {jj*1024}')
            p(f'v_add_u32 v4, {(512*rnd+16*jj)*1024:#x}, v1')
            p(f'global_load_lds_dwordx4 v4, {swo}')
        for ksl in range(16):
            p(f's_waitcnt vmcnt({30-2*ksl})')
            for b in range(2):
                a=((rnd*16+ksl)*2+b)*4
                p(f'ds_read_b64_tr_b16 {A(a,2)}, {"v3" if b else "v2"} offset:{ksl*2048}')
                p(f'ds_read_b64_tr_b16 {A(a+2,2)}, {"v3" if b else "v2"} offset:{ksl*2048+1024}')
        p('s_waitcnt lgkmcnt(0)')
OB=48
AC=16
def out_setup(p):
    lin(p,'v1',lambda t:(t>>6)*32768+(t&63)*16,'v4')
    lin(p,'v2',lambda t:(t>>6)*4096+(t&63)*16,'v4')
    lin(p,'v3',lambda t:(t>>6)*1024+(t&63)*16,'v4')
    def f(t): w=t>>6; return w&1, w>>1, t&15, (t>>4)&3
    lin(p,'v5',lambda t:(16*f(t)[1]+f(t)[2])*1024+(16*f(t)[0]+4*f(t)[3])*2,'v4')
    lin(p,'v6',lambda t:f(t)[1]*16384+((2*f(t)[0]+(f(t)[3]>>1))*16+f(t)[2])*16+(f(t)[3]&1)*8,'v4')
    lin(p,'v7',lambda t:(16*f(t)[0]+4*f(t)[3])*4+WS_MOE_Y,'v4')
    lin(p,'v8',lambda t:16*f(t)[1]+f(t)[2],'v4')
def gen_out(p):
    p('.p2align 8\nout_kernel:')
    p('s_cmp_ge_u32 s2, 256\ns_cbranch_scc1 L_out_exit')
    p(f's_load_dwordx2 s[4:5], s[0:1], {KA_WS}\ns_load_dwordx2 s[6:7], s[0:1], {KA_WO}\ns_load_dwordx2 s[8:9], s[0:1], {KA_X}\ns_load_dwordx2 s[10:11], s[0:1], {KA_OUT}')
    p('v_lshrrev_b32 v1, 6, v0\nv_readfirstlane_b32 s14, v1\ns_lshl_b32 s15, s14, 15')
    p('s_lshr_b32 s3, s2, 3\ns_and_b32 s12, s3, 15\ns_lshr_b32 s3, s3, 4\ns_and_b32 s13, s2, 7\ns_lshl_b32 s13, s13, 1\ns_add_u32 s13, s13, s3')
    p('s_waitcnt lgkmcnt(0)')
    p('s_lshl_b32 s3, s12, 6\ns_add_u32 s6, s6, s3\ns_addc_u32 s7, s7, 0\ns_add_u32 s8, s8, s3\ns_addc_u32 s9, s9, 0\ns_add_u32 s10, s10, s3\ns_addc_u32 s11, s11, 0')
    out_load_wo(p,'s[6:7]','s15')
    out_setup(p)
    p('s_lshl_b32 s3, s12, 10\nv_add_u32 v6, s3, v6\ns_lshl_b32 s3, s12, 7\nv_add_u32 v7, s3, v7')
    p(f'v_mov_b32 v4, {WS_MOE_Y+4096:#x}')
    p('global_load_dwordx4 v[32:35], v7, s[4:5]\nglobal_load_dwordx4 v[36:39], v7, s[4:5] offset:2048\nglobal_load_dwordx2 v[40:41], v4, s[4:5]')
    p('s_mov_b32 s20, 0xffff0000')
    p('s_barrier')
    p('L_out_loop:')
    p(f's_lshl_b32 s3, s13, 18\ns_add_u32 s3, s3, {WS_OF:#x}\ns_add_u32 s16, s4, s3\ns_addc_u32 s17, s5, 0\ns_add_u32 s18, s16, 0x20000\ns_addc_u32 s19, s17, 0')
    p('s_lshl_b32 s3, s13, 15\nv_add_u32 v9, s3, v5\nv_add_u32 v10, s3, v6')
    p('global_load_dwordx2 v[42:43], v9, s[8:9]\nglobal_load_dwordx2 v[44:45], v10, s[4:5]')
    def ld(ks):
        if ks%4==0: p(f'v_add_u32 v11, {ks*1024}, v1')
        r=OB+(ks%24)*8
        p(f'global_load_dwordx4 {V(r,4)}, v11, s[16:17] offset:{(ks%4)*1024}\nglobal_load_dwordx4 {V(r+4,4)}, v11, s[18:19] offset:{(ks%4)*1024}')
    for ks in range(24): ld(ks)
    issued=24
    for ks in range(32):
        p(f's_waitcnt vmcnt({2*(issued-ks-1)})')
        r=OB+(ks%24)*8
        for b in range(2):
            for tt in range(2):
                d=V(AC+(tt*2+b)*4,4)
                p(f'v_mfma_f32_16x16x32_bf16 {d}, {A((ks*2+b)*4,4)}, {V(r+4*tt,4)}, {d if ks else 0}')
        if issued<32: ld(issued); issued+=1
    for t in range(4): p(f'ds_write_b128 v2, {V(AC+4*t,4)} offset:{1024*t}')
    p('s_waitcnt lgkmcnt(0)\ns_barrier')
    for t in range(4): p(f'ds_read_b128 {V(AC+4*t,4)}, v3 offset:{4096*t}')
    p('s_lshl_b32 s3, s13, 5\nv_add_u32 v12, s3, v8')
    p('v_cmp_eq_u32 s[22:23], v12, v40\nv_cmp_eq_u32 s[24:25], v12, v41')
    for r in range(4):
        p(f'v_cndmask_b32 {V(240+r)}, 0, {V(32+r)}, s[22:23]\nv_cndmask_b32 {V(240+r)}, {V(240+r)}, {V(36+r)}, s[24:25]')
    for i in range(2):
        p(f'v_lshlrev_b32 {V(244+2*i)}, 16, {V(44+i)}\nv_and_b32 {V(245+2*i)}, s20, {V(44+i)}')
        p(f'v_add_f32 {V(244+2*i)}, {V(244+2*i)}, {V(240+2*i)}\nv_add_f32 {V(245+2*i)}, {V(245+2*i)}, {V(241+2*i)}')
        p(f'v_cvt_pk_bf16_f32 v13, {V(244+2*i)}, {V(245+2*i)}\nv_lshlrev_b32 {V(244+2*i)}, 16, v13\nv_and_b32 {V(245+2*i)}, s20, v13')
        p(f'v_lshlrev_b32 {V(248+2*i)}, 16, {V(42+i)}\nv_and_b32 {V(249+2*i)}, s20, {V(42+i)}')
    p('s_waitcnt lgkmcnt(0)\ns_barrier')
    for r in range(4):
        p(f'v_add_f32 {V(AC+r)}, {V(AC+r)}, {V(AC+4+r)}\nv_add_f32 {V(AC+8+r)}, {V(AC+8+r)}, {V(AC+12+r)}\nv_add_f32 {V(AC+r)}, {V(AC+r)}, {V(AC+8+r)}')
    for i in range(2):
        a,b=V(AC+2*i),V(AC+2*i+1)
        p(f'v_cvt_pk_bf16_f32 v13, {a}, {b}\nv_lshlrev_b32 {a}, 16, v13\nv_and_b32 {b}, s20, v13')
        p(f'v_add_f32 {a}, {V(248+2*i)}, {a}\nv_add_f32 {b}, {V(249+2*i)}, {b}')
        p(f'v_cvt_pk_bf16_f32 v13, {a}, {b}\nv_lshlrev_b32 {a}, 16, v13\nv_and_b32 {b}, s20, v13')
        p(f'v_add_f32 {a}, {a}, {V(244+2*i)}\nv_add_f32 {b}, {b}, {V(245+2*i)}')
        p(f'v_cvt_pk_bf16_f32 {V(14+i)}, {a}, {b}')
    p('global_store_dwordx2 v9, v[14:15], s[10:11]')
    p('s_add_u32 s13, s13, 16\ns_cmp_lt_u32 s13, 64\ns_cbranch_scc1 L_out_loop')
    p('L_out_exit:\ns_endpgm')
```

```python
from common import *
def gen_prep(p):
    p('.p2align 8\nprep_kernel:')
    p('s_cmp_ge_u32 s2, 128\ns_cbranch_scc1 L_prep_exit')
    p(f's_load_dwordx2 s[4:5], s[0:1], {KA_X}\ns_load_dwordx2 s[6:7], s[0:1], {KA_WR}\ns_load_dwordx2 s[8:9], s[0:1], {KA_WS}')
    lin(p,'v1',lambda t:(t>>6)*256+((t>>4)&3)*16,'v5')
    lin(p,'v2',lambda t:(t&15)*1024+(t>>6)*256+((t>>4)&3)*16,'v5')
    p('s_lshl_b32 s3, s2, 14\nv_add_u32 v2, s3, v2')
    lin(p,'v3',lambda t:(t&15)*16+(t>>6)*4,'v5')
    lin(p,'v4',lambda t:(t&15)*16,'v5')
    lin(p,'v6',lambda t:(t>>6)*4096+(t&63)*16,'v5')
    p('v_add_u32 v6, s3, v6')
    p('s_waitcnt lgkmcnt(0)')
    for i in range(4): p(f'global_load_dwordx4 {V(16+4*i,4)}, v2, s[4:5] offset:{64*i}')
    for i in range(4): p(f'global_load_dwordx4 {V(32+4*i,4)}, v1, s[6:7] offset:{64*i}')
    p('s_mov_b32 s10, 0xffff0000')
    p('s_waitcnt vmcnt(4)')
    for i in range(16):
        p(f'v_lshlrev_b32 {V(48+2*i)}, 16, {V(16+i)}')
        p(f'v_and_b32 {V(49+2*i)}, s10, {V(16+i)}')
    def wg_reduce(x, region):
        xgroup(p,'v_add_f32',x,'v5')
        p(f'ds_write_b32 v3, {x} offset:{region}')
        p('s_waitcnt lgkmcnt(0)\ns_barrier')
        p(f'ds_read_b128 v[8:11], v4 offset:{region}')
        p('s_waitcnt lgkmcnt(0)')
        p(f'v_add_f32 v8, v8, v9\nv_add_f32 v10, v10, v11\nv_add_f32 {x}, v8, v10')
    p('v_add_f32 v12, v48, v49\nv_add_f32 v13, v50, v51')
    for i in range(2,16):
        p(f'v_add_f32 v12, v12, {V(48+2*i)}\nv_add_f32 v13, v13, {V(49+2*i)}')
    p('v_add_f32 v12, v12, v13')
    wg_reduce('v12',0)
    p(f'v_mul_f32 v12, {f32(1/512)}, v12')
    p('v_mov_b32 v13, 0\nv_mov_b32 v14, 0')
    for i in range(16):
        p(f'v_sub_f32 v8, {V(48+2*i)}, v12\nv_sub_f32 v9, {V(49+2*i)}, v12\nv_fmac_f32 v13, v8, v8\nv_fmac_f32 v14, v9, v9')
    p('v_add_f32 v13, v13, v14')
    wg_reduce('v13',256)
    p(f'v_mul_f32 v13, {f32(1/512)}, v13')
    p('v_cvt_pk_bf16_f32 v14, v12, v13')
    p('v_lshlrev_b32 v12, 16, v14\nv_and_b32 v13, s10, v14')
    p(f'v_add_f32 v13, {f32(1e-5)}, v13')
    p('v_cvt_pk_bf16_f32 v13, v13, v13\nv_and_b32 v13, s10, v13')
    p('v_sqrt_f32 v13, v13')
    p('v_cvt_pk_bf16_f32 v13, v13, v13\nv_and_b32 v13, s10, v13')
    p('v_rcp_f32 v13, v13')
    p('v_mov_b32 v14, 0')
    p('s_waitcnt vmcnt(0)')
    for i in range(16):
        p(f'v_sub_f32 v8, {V(48+2*i)}, v12\nv_sub_f32 v9, {V(49+2*i)}, v12')
        p('v_cvt_pk_bf16_f32 v10, v8, v9')
        p('v_lshlrev_b32 v8, 16, v10\nv_and_b32 v9, s10, v10')
        p('v_mul_f32 v8, v8, v13\nv_mul_f32 v9, v9, v13')
        p(f'v_cvt_pk_bf16_f32 {V(16+i)}, v8, v9')
        p(f'v_dot2_f32_bf16 v14, {V(16+i)}, {V(32+i)}, v14')
    for i in range(4): p(f'global_store_dwordx4 v6, {V(16+4*i,4)}, s[8:9] offset:{1024*i}')
    wg_reduce('v14',512)
    p('v_cvt_pk_bf16_f32 v14, v14, v14\nv_and_b32 v14, s10, v14')
    p('v_ashrrev_i32 v8, 31, v14\nv_or_b32 v8, 0x80000000, v8\nv_xor_b32 v14, v14, v8\nv_and_b32 v14, s10, v14')
    p('s_lshl_b32 s3, s2, 4\nv_add_u32 v8, s3, v0\nv_sub_u32 v9, 0xffff, v8\nv_or_b32 v14, v14, v9')
    p(f'v_lshlrev_b32 v8, 2, v8\nv_add_u32 v8, {WS_KEY:#x}, v8')
    p('v_cmp_gt_u32 vcc, 16, v0\ns_and_saveexec_b64 s[12:13], vcc\ns_cbranch_execz L_prep_exit')
    p('global_store_dword v8, v14, s[8:9]')
    p('L_prep_exit:\ns_endpgm')
```

```python
from common import *
def wreg(m,b,ks):
    i=((m*2+b)*16+ks)*4
    return 256+i if i<256 else 128+(i-256)
ACC=64
def acc(m,b,tt): return ACC+((m*2+b)*2+tt)*4
XB=112
def gen_qkv(p):
    p('.p2align 8\nqkv_kernel:')
    p('s_cmp_ge_u32 s2, 256\ns_cbranch_scc1 L_qkv_exit')
    p('s_and_b32 s3, s2, 7\ns_cmp_eq_u32 s3, 0\ns_cbranch_scc1 L_qkv_exit')
    p(f's_load_dwordx2 s[4:5], s[0:1], {KA_WQ}\ns_load_dwordx2 s[6:7], s[0:1], {KA_WK}\ns_load_dwordx2 s[8:9], s[0:1], {KA_WV}\ns_load_dwordx2 s[10:11], s[0:1], {KA_WS}')
    p('s_sub_u32 s3, s3, 1\ns_lshl_b32 s3, s3, 5\ns_lshr_b32 s12, s2, 3\ns_add_u32 s3, s3, s12')
    p('s_mul_i32 s12, s3, 9363\ns_lshr_b32 s12, s12, 16\ns_mul_i32 s13, s12, 7\ns_sub_u32 s13, s3, s13')
    p('v_lshrrev_b32 v1, 6, v0\nv_readfirstlane_b32 s14, v1\ns_lshl_b32 s15, s14, 13')
    p('s_waitcnt lgkmcnt(0)')
    p('s_lshl_b32 s16, s12, 8')
    for k in (4,6,8): p(f's_add_u32 s{k}, s{k}, s16\ns_addc_u32 s{k+1}, s{k+1}, 0')
    lin(p,'v2',lambda t:(t>>6)*8192+(t&63)*16,'v5')
    lin(p,'v3',lambda t:(t&63)*16+0x20000,'v5')
    lin(p,'v4',lambda t:(t>>6)*1024+(t&63)*16,'v5')
    lin(p,'v6',lambda t:(t>>6)*2048+(t&63)*16+8192,'v5')
    def dma_xn(seg_sgpr, ldsbase_sgpr):
        p(f's_lshl_b32 s20, {seg_sgpr}, 15\nv_add_u32 v7, s20, v2')
        for half in range(2):
            p(f's_add_u32 m0, {ldsbase_sgpr}, {half*4096}')
            if half: p('v_add_u32 v7, 4096, v7')
            for jj in range(4): p(f'global_load_lds_dwordx4 v7, s[10:11] offset:{jj*1024}')
    chunks=[]
    for m,sb in ((1,'s[6:7]'),(2,'s[8:9]'),(0,'s[4:5]')):
        for cidx in range(4):
            reads=[]
            for b in range(2):
                for ksl in range(4):
                    r=wreg(m,b,cidx*4+ksl)
                    reads.append((R(r,2),32*ksl,b)); reads.append((R(r+2,2),32*ksl+4,b))
            chunks.append(dict(sbase=sb,row0=128*cidx,stride=8192,pat='D',reads=reads))
    p('s_add_u32 s18, s15, 0x20000')
    dma_xn('s13','s18')
    load_chunks(p,chunks,'s15',8,'qkv')
    p('s_mov_b32 s17, s13')
    p(f's_mov_b32 s22, {f32(QSCALE)}')
    p('L_qkv_loop:')
    p('s_waitcnt vmcnt(6)\ns_barrier')
    p('s_add_u32 s19, s17, 7\ns_xor_b32 s18, s18, 0x20000\ns_cmp_ge_u32 s19, 64\ns_cbranch_scc1 L_qkv_nodma')
    dma_xn('s19','s18')
    p('L_qkv_nodma:')
    def rd(ks):
        for tt in range(2): p(f'ds_read_b128 {V(XB+(ks%2)*8+tt*4,4)}, v3 offset:{tt*16384+ks*1024}')
    rd(0)
    for ks in range(16):
        if ks<15: rd(ks+1); p('s_waitcnt lgkmcnt(2)')
        else: p('s_waitcnt lgkmcnt(0)')
        for m in (1,2,0):
            for b in range(2):
                for tt in range(2):
                    a=V(acc(m,b,tt),4); w=R(wreg(m,b,ks),4); x=V(XB+(ks%2)*8+tt*4,4); c='0' if ks==0 else a
                    if m==2: p(f'v_mfma_f32_16x16x32_bf16 {a}, {x}, {w}, {c}')
                    else: p(f'v_mfma_f32_16x16x32_bf16 {a}, {w}, {x}, {c}')
    p(f's_lshl_b32 s20, s17, 5\ns_add_u32 s20, s20, s12\ns_mul_i32 s20, s20, 24576\ns_add_u32 s20, s20, {WS_QKV:#x}')
    p('v_add_u32 v8, s20, v4\nv_add_u32 v9, s20, v6\nv_add_u32 v10, 4096, v8\nv_add_u32 v11, 16384, v8\nv_add_u32 v12, 20480, v8')
    T=40
    for tt in range(2):
        for r in range(4): p(f'v_cvt_pk_bf16_f32 {V(T+tt*4+r)}, {V(acc(1,0,tt)+r)}, {V(acc(1,1,tt)+r)}')
        p(f'global_store_dwordx4 {"v10" if tt else "v8"}, {V(T+tt*4,4)}, s[10:11]')
    for b in range(2):
        for tt in range(2):
            for r2 in range(2): p(f'v_cvt_pk_bf16_f32 {V(T+8+b*4+tt*2+r2)}, {V(acc(2,b,tt)+2*r2)}, {V(acc(2,b,tt)+2*r2+1)}')
        p(f'global_store_dwordx4 v9, {V(T+8+b*4,4)}, s[10:11] offset:{b*1024}')
    for i in range(16): p(f'v_mul_f32 {V(acc(0,0,0)+i)}, s22, {V(acc(0,0,0)+i)}')
    for tt in range(2):
        for r in range(4): p(f'v_cvt_pk_bf16_f32 {V(T+16+tt*4+r)}, {V(acc(0,0,tt)+r)}, {V(acc(0,1,tt)+r)}')
        p(f'global_store_dwordx4 {"v12" if tt else "v11"}, {V(T+16+tt*4,4)}, s[10:11]')
    p('v_xor_b32 v3, 0x20000, v3')
    p('s_mov_b32 s17, s19\ns_cmp_lt_u32 s17, 64\ns_cbranch_scc1 L_qkv_loop')
    p('L_qkv_exit:\ns_endpgm')
```

```python
from common import *
L_KX=0; L_VX=8192; L_MEM=16384; L_Q=24576; L_K=L_Q+8*288; L_O=L_K+8*288+0
L_O=(L_O+255)//256*256
L_RES=32768
assert L_O+2048<=32768
IDX=1; SEL=2
ONES=6
PM=10
VPK=14
aL16=16; aL16b=17; aL16c=18; aPST=19; aINB=20; aMST=21; aMPL=22; aPF=23; aVP=24
aQW=25; aKW=26; aQR=27; aKR=28; aOW=29; aOR0=30; aOR1=31
M=32
ACC=64
T=88
def acc(m,b): return ACC+(m*2+b)*4
ALLOPS=[('w',m,b,k) for m in range(3) for b in range(2) for k in range(8)]+[('o',ph,b,k) for ph in range(4) for b in range(2) for k in range(2)]
BLOCKA=[('w',m,b,k) for k in range(2) for m in range(3) for b in range(2)]
PREF=BLOCKA[:7]
VFILL=[('w',2,b,k) for k in range(2,8) for b in range(2)]
STREAM=VFILL[3:]
RES=PREF+STREAM
assert len(RES)==16
REGOPS=[o for o in ALLOPS if o not in RES]
assert len(REGOPS)==48
OPREG={o:128+8*i for i,o in enumerate(REGOPS)}
def res_addr(op,w):
    a=L_RES+RES.index(op)*8192+w*2048
    return (V(aL16+a//65536), a%65536)

def gen_rec(p, standalone=True):
    p('.p2align 8\nrec_kernel:')
    p('s_cmp_ge_u32 s2, 256\ns_cbranch_scc1 L_rec_exit')
    p('s_and_b32 s3, s2, 7\ns_cmp_lg_u32 s3, 0\ns_cbranch_scc1 L_rec_exit')
    p(f's_load_dwordx2 s[4:5], s[0:1], {KA_WS}\ns_load_dwordx2 s[6:7], s[0:1], {KA_WQ}\ns_load_dwordx2 s[8:9], s[0:1], {KA_WK}\ns_load_dwordx2 s[10:11], s[0:1], {KA_WV}')
    p(f's_load_dwordx2 s[16:17], s[0:1], {KA_WO}\ns_load_dwordx2 s[18:19], s[0:1], {KA_MEM0}\ns_load_dwordx2 s[28:29], s[0:1], {KA_DBG}')
    p('s_lshr_b32 s12, s2, 3')
    p('v_lshrrev_b32 v1, 6, v0\nv_readfirstlane_b32 s14, v1\ns_lshl_b32 s15, s14, 13')
    p('s_waitcnt lgkmcnt(0)')
    p('s_lshl_b32 s13, s12, 8')
    for k in (6,8,10): p(f's_add_u32 s{k}, s{k}, s13\ns_addc_u32 s{k+1}, s{k+1}, 0')
    p('s_lshl_b32 s13, s12, 17\ns_add_u32 s16, s16, s13\ns_addc_u32 s17, s17, 0')
    tmp='v2'
    lin(p,V(aL16),lambda t:(t&63)*16,tmp)
    p(f'v_add_u32 {V(aL16b)}, 0x10000, {V(aL16)}\nv_add_u32 {V(aL16c)}, 0x20000, {V(aL16)}')
    def pst(t):
        w=t>>6; c=t&15; g=(t>>4)&3; u=8*w+4*(c>>3)+g
        return WS_RINGA+u*2048+(c&7)*8
    lin(p,V(aPST),pst,tmp); p(f's_lshl_b32 s13, s12, 6\nv_add_u32 {V(aPST)}, s13, {V(aPST)}')
    def inb(t):
        w=t>>6; l=t&63; m=l&15; gl=l>>4; pc=m>>2; sub=m&3
        return WS_RINGA+w*65536+(4*gl+sub)*64+pc*16
    lin(p,V(aINB),inb,tmp); p(f's_lshl_b32 s13, s12, 11\nv_add_u32 {V(aINB)}, s13, {V(aINB)}')
    def mst(t):
        w=t>>6; n=t&7; pc=(t>>4)&3
        return WS_RINGB+w*2048+(n>>1)*16+pc*4
    lin(p,V(aMST),mst,tmp); p(f's_lshl_b32 s13, s12, 6\nv_add_u32 {V(aMST)}, s13, {V(aMST)}')
    lin(p,V(aMPL),lambda t:WS_RINGB+4096+(t&63)*16,tmp)
    lin(p,V(aPF),lambda t:(t&15)*128+((t>>4)&1)*8192,tmp)
    lin(p,V(aVP),lambda t:4096+(t>>6)*512+(t&63)*8,tmp)
    for r in range(4): p(f'v_mov_b32 {V(T+r)}, -1')
    p(f'v_xor_b32 v3, 0x40000, {V(aINB)}\nv_xor_b32 v4, 0x2000, {V(aMST)}')
    for a in (V(aINB),'v3'):
        for off in (0,1024): p(f'global_store_dwordx4 {a}, {V(T,4)}, s[4:5] offset:{off} sc1')
    p(f'global_store_dword {V(aMST)}, {V(T)}, s[4:5] sc1\nglobal_store_dword v4, {V(T)}, s[4:5] sc1')
    def m0l(t):
        w=t>>6; n=t&7; pc=(t>>4)&3
        return (((n>>1)&1)*512 + 128*w + 16*(n&1) + 2*pc + (n>>2))*2
    lin(p,'v5',m0l,tmp)
    p('s_and_b32 s13, s12, 3\ns_lshl_b32 s13, s13, 11')
    p('s_lshr_b32 s20, s12, 3\ns_lshl_b32 s20, s20, 6\ns_add_u32 s13, s13, s20')
    p('s_bfe_u32 s20, s12, 0x10002\ns_lshl_b32 s20, s20, 4\ns_add_u32 s13, s13, s20')
    p('v_add_u32 v5, s13, v5')
    p(f'global_load_ushort {V(VPK)}, v5, s[18:19]')
    p('s_waitcnt vmcnt(0)\ns_barrier')
    p('s_cmp_lg_u32 s14, 0\ns_cbranch_scc1 L_rec_noarr')
    p('s_getreg_b32 s13, hwreg(HW_REG_XCC_ID, 0, 4)\ns_lshl_b32 s13, 1, s13')
    p('s_mov_b64 exec, 1\nv_mov_b32 v3, 0\nv_mov_b32 v4, s13\nv_mov_b32 v5, 1')
    p('global_atomic_or v3, v4, s[28:29] offset:4\ns_waitcnt vmcnt(0)\nglobal_atomic_add v3, v5, s[28:29]\ns_mov_b64 exec, -1')
    p('L_rec_noarr:')
    HOLD={}
    for i,o in enumerate(RES[:12]): HOLD[o]=32+8*i
    chunks=[]
    def dst(o):
        if o in OPREG: return OPREG[o]
        if o in HOLD: return HOLD[o]
        return None
    late=[]
    def mk(ops_reads, **kw):
        chunks.append(dict(reads=ops_reads, **kw))
    direct=RES[12:]
    order=[]
    for m,sb in ((2,'s[10:11]'),(0,'s[6:7]'),(1,'s[8:9]')):
        for cidx in range(4): order.append(('w',m,cidx,sb))
    for ph in range(4): order.append(('o',ph,None,'s[16:17]'))
    def ops_of(c):
        if c[0]=='w': return [('w',c[1],b,2*c[2]+kl) for b in range(2) for kl in range(2)]
        return [('o',c[1],b,k) for b in range(2) for k in range(2)]
    first=[c for c in order if any(o in direct for o in ops_of(c))]
    assert len(first)==1 and all(o in direct for o in ops_of(first[0])), (first,direct)
    order=first+[c for c in order if c[0]=='o']+[c for c in order if c not in first and c[0]!='o']
    p('s_lshl_b32 s13, s14, 11\n'+f'v_add_u32 v3, s13, {V(aL16)}\nv_add_u32 v4, s13, {V(aL16b)}\nv_add_u32 v5, s13, {V(aL16c)}')
    def res_write(o,reg):
        a=L_RES+RES.index(o)*8192
        p(f'ds_write_b128 {V(3+a//65536)}, {V(reg,4)} offset:{a%65536}\nds_write_b128 {V(3+a//65536)}, {V(reg+4,4)} offset:{a%65536+1024}')
    for c in order:
        reads=[]; post=None
        for n,o in enumerate(ops_of(c)):
            d=dst(o)
            if d is None: d=32+8*n
            kl=o[3]%2
            for q in range(4):
                rho=64*kl+32*(q//2)+(2*(q%2) if c[0]=='w' else (q%2))
                reads.append((R(d+2*q,2),rho,o[2]))
        if c in first:
            def post(c=c):
                for n,o in enumerate(ops_of(c)): res_write(o,32+8*n)
                p('s_waitcnt lgkmcnt(0)')
        kw=dict(sbase=c[3],row0=128*c[2],stride=8192,pat='S') if c[0]=='w' else dict(sbase=c[3],row0=0,stride=1024,pat='So',coff=256*c[1])
        if post: kw['post']=post
        mk(reads,**kw)
    load_chunks(p,chunks,'s15',6,'rec')
    for o in RES[:12]: res_write(o,HOLD[o])
    p('s_waitcnt lgkmcnt(0)')
    tmp=V(T+8)
    lin(p,V(IDX),lambda t:0xEEEE if (t>>1)&1 else 0x4444,tmp)
    p(f'v_and_b32 {V(T)}, 1, v0\nv_lshlrev_b32 {V(T)}, 4, {V(T)}\nv_mov_b32 {V(T+1)}, 0x3f80\nv_lshlrev_b32 {V(T+1)}, {V(T)}, {V(T+1)}')
    p(f'v_bfe_u32 {V(T+2)}, v0, 1, 2')
    for r in range(4):
        p(f'v_cmp_eq_u32 vcc, {r}, {V(T+2)}\nv_cndmask_b32 {V(SEL+r)}, 0, {V(T+1)}, vcc')
    for r in range(4): p(f'v_mov_b32 {V(ONES+r)}, 0x3f803f80\nv_mov_b32 {V(PM+r)}, 0')
    lin(p,V(aQW),lambda t:((t>>6)*16+(t&15))*4,tmp)
    p(f'v_bfe_u32 {V(T)}, v0, 4, 2\nv_mul_u32_u24 {V(T)}, 576, {V(T)}\nv_add_u32 {V(aQW)}, {V(aQW)}, {V(T)}\nv_add_u32 {V(aKW)}, {L_K}, {V(aQW)}\nv_add_u32 {V(aQW)}, {L_Q}, {V(aQW)}')
    lin(p,V(T),lambda t:((t>>4)&3)*16,tmp)
    p(f'v_and_b32 {V(T+1)}, 7, v0\nv_mul_u32_u24 {V(T+1)}, 288, {V(T+1)}\nv_add3_u32 {V(aQR)}, {V(T)}, {V(T+1)}, 0\nv_add_u32 {V(aQR)}, {L_Q}, {V(aQR)}')
    lin(p,V(T+1),lambda t:2*((t&15)>>2)+(t&1),tmp)
    p(f'v_mul_u32_u24 {V(T+1)}, 288, {V(T+1)}\nv_add_u32 {V(aKR)}, {V(T)}, {V(T+1)}\nv_add_u32 {V(aKR)}, {L_K}, {V(aKR)}')
    sw=lambda i: bit(i,1)|bit(i,0)<<1|bit(i,2)<<2|bit(i,1)<<3
    def ow(t):
        w=t>>6; i=t&7; g=(t>>4)&3
        return i*256+((4*w+g)^sw(i))*16
    def orr(t):
        c=t&15; g=(t>>4)&3; i=2*(c>>2)+(c&1); half=(c>>1)&1
        return i*256+((2*g+half)^sw(i))*16
    lin(p,V(aOW),ow,tmp); lin(p,V(aOR0),orr,tmp); p(f'v_xor_b32 {V(aOR1)}, 128, {V(aOR0)}')
    for ph in range(4): p(f's_add_u32 s{20+2*ph}, s4, {ph*65536}\ns_addc_u32 s{21+2*ph}, s5, 0')
    p(f's_mul_i32 s13, s12, 24576\ns_lshl_b32 s3, s14, 11\ns_add_u32 s13, s13, s3\ns_add_u32 s13, s13, {WS_QKV:#x}')
    p('s_add_u32 s30, s4, s13\ns_addc_u32 s31, s5, 0\ns_add_u32 s32, s30, 8192\ns_addc_u32 s33, s31, 0')
    p(f's_lshl_b32 s13, s12, 13\ns_add_u32 s13, s13, {WS_KVM:#x}\ns_add_u32 s34, s4, s13\ns_addc_u32 s35, s5, 0')
    p(f's_add_u32 s36, s30, {32*24576}\ns_addc_u32 s37, s31, 0')
    p(f's_mov_b32 s38, {f32(QSCALE)}\ns_mov_b32 s39, {f32(QSCALE)}')
    p('s_mov_b32 s40, 0\ns_mov_b32 s41, 0x400000')
    p('s_mov_b32 s44, 0x00550055\ns_mov_b32 s45, 0x00550055')
    p('s_lshl_b32 s3, s14, 11\ns_mov_b32 m0, s3')
    p(f'global_load_lds_dwordx4 {V(aL16)}, s[30:31] sc1\nglobal_load_lds_dwordx4 {V(aL16)}, s[30:31] offset:1024 sc1')
    p('s_add_u32 m0, s3, 8192')
    p(f'global_load_lds_dwordx4 {V(aL16)}, s[32:33] sc1\nglobal_load_lds_dwordx4 {V(aL16)}, s[32:33] offset:1024 sc1')
    p(f'v_mov_b32 {V(T)}, 0')
    p('L_rec_tb:')
    p(f'global_load_dwordx2 {V(T+2,2)}, {V(T)}, s[28:29] sc1\ns_waitcnt vmcnt(0)')
    p(f'v_readfirstlane_b32 s3, {V(T+2)}\nv_readfirstlane_b32 s13, {V(T+3)}')
    p('s_cmp_ge_u32 s3, 32\ns_cbranch_scc1 L_rec_tbok\ns_sleep 4\ns_sub_u32 s41, s41, 1\ns_cbranch_scc0 L_rec_tb\ns_mov_b32 s41, 0')
    p('L_rec_tbok:')
    p(f'v_mov_b32_dpp {V(T)}, {V(VPK)} quad_perm:[1,0,3,2] row_mask:0xf bank_mask:0xf\nv_lshlrev_b32 {V(T)}, 16, {V(T)}\nv_or_b32 {V(T)}, {V(T)}, {V(VPK)}')
    p('s_bcnt1_i32_b32 s13, s13\ns_cmp_eq_u32 s13, 1\ns_cbranch_scc0 L_rec_slow')
    for mode,st in (('f',''),('s','sc1')):
        if mode=='s': p('L_rec_slow:')
        p(f's_mov_b64 exec, s[44:45]\nglobal_store_dword {V(aMST)}, {V(T)}, s[4:5] {st}\ns_mov_b64 exec, -1')
        p(f'v_xor_b32 {V(aMST)}, 0x2000, {V(aMST)}')
        for w in range(1,4): p(f's_cmp_eq_u32 s14, {w}\ns_cbranch_scc1 L_rec_{mode}{w}')
        for w in range(4): body(p,w,mode,st)
    p('L_rec_exit:\ns_endpgm')

def body(p,w,mode,st):
    L=f'L_rec_{mode}{w}'
    tail=[]
    def opnd(o, loc): return R(loc[o],8)
    def smf(d,a,b): p(f'v_smfmac_f32_16x16x64_bf16 {V(d,4)}, {V(a,4)}, {b}, {V(IDX)}')
    def mf(d,a,b,c=None): p(f'v_mfma_f32_16x16x32_bf16 {V(d,4)}, {V(a,4)}, {V(b,4)}, {V(c,4) if c is not None else 0}')
    def mf16(d,a,b,c): p(f'v_mfma_f32_16x16x16_bf16 {V(d,4)}, {V(a,2)}, {V(b,2)}, {V(c,4)}')
    def ldres(o,reg):
        a,off=res_addr(o,w)
        p(f'ds_read_b128 {V(reg,4)}, {a} offset:{off}\nds_read_b128 {V(reg+4,4)}, {a} offset:{off+1024}')
    def poll_issue(reg,addr,off):
        return f'global_load_dwordx4 {V(reg,4)}, {V(addr)}, s[4:5] offset:{off} sc1\nglobal_load_dwordx4 {V(reg+4,4)}, {V(addr)}, s[4:5] offset:{off+1024} sc1'
    def chk(reg,t):
        return f'v_max3_u32 {V(t)}, {V(reg)}, {V(reg+1)}, {V(reg+2)}\nv_max3_u32 {V(t+1)}, {V(reg+3)}, {V(reg+4)}, {V(reg+5)}\nv_max3_u32 {V(t)}, {V(t)}, {V(reg+6)}, {V(reg+7)}\nv_max_u32 {V(t)}, {V(t)}, {V(t+1)}\nv_cmp_eq_u32 vcc, -1, {V(t)}'
    def poll_wait(tag,reg,addr,off,t,vm):
        p(f's_waitcnt vmcnt({vm})'); p(chk(reg,t)); p(f's_cbranch_vccnz {L}_{tag}_retry\n{L}_{tag}_ok:')
        tail.append(f'{L}_{tag}_retry:\ns_sub_u32 s41, s41, 1\ns_cbranch_scc1 {L}_{tag}_dead\n'+poll_issue(reg,addr,off)+'\ns_waitcnt vmcnt(0)\n'+chk(reg,t)+f'\ns_cbranch_vccnz {L}_{tag}_retry\ns_branch {L}_{tag}_ok\n{L}_{tag}_dead:\ns_mov_b32 s41, 0\ns_branch {L}_{tag}_ok')
    freeq=[q for q in (1,2,3) if q!=w][:2]
    loc=dict(OPREG)
    preloc=[M+8*freeq[0],M+8*freeq[1]]+[T+8*i for i in range(5)]
    for o,r in zip(PREF,preloc): loc[o]=r
    CT=VPK
    p(f'{L}:')
    p(f'{L}_top:')
    for i in range(24): p(f'v_mov_b32 {V(ACC+i)}, 0')
    for o in PREF: ldres(o,loc[o])
    p(poll_issue(M,aMPL,-4096))
    if w: p(poll_issue(M+8*w,aMPL,-4096+2048*w))
    poll_wait('b0',M,aMPL,-4096,CT,2 if w else 0)
    p('s_waitcnt lgkmcnt(0)')
    for n,o in enumerate(BLOCKA):
        smf(acc(o[1],o[2]),M+4*o[3],opnd(o,loc))
        if n==3 and w:
            poll_wait('bq',M+8*w,aMPL,-4096+2048*w,CT,0)
            p(f'ds_write_b128 {V(aL16)}, {V(M+8*w,4)} offset:{L_MEM+2048*w}\nds_write_b128 {V(aL16)}, {V(M+8*w+4,4)} offset:{L_MEM+2048*w+1024}')
        if n==8:
            p('s_waitcnt lgkmcnt(0)\ns_barrier')
            for q in (1,2,3):
                if q!=w: p(f'ds_read_b128 {V(M+8*q,4)}, {V(aL16)} offset:{L_MEM+2048*q}\nds_read_b128 {V(M+8*q+4,4)}, {V(aL16)} offset:{L_MEM+2048*q+1024}')
    p(f's_cmp_ge_u32 s40, 63\ns_cbranch_scc1 {L}_nopf\nglobal_load_dword v0, {V(aPF)}, s[36:37] sc1\n{L}_nopf:')
    p('s_waitcnt lgkmcnt(0)')
    for k in range(2,8):
        for b in range(2): smf(acc(0,b),M+4*k,opnd(('w',0,b,k),loc))
    QOP=T; KB=T+16; VS0=T+32; VS1=M
    ldres(STREAM[0],VS0); ldres(STREAM[1],VS1)
    ks=[(b,k) for k in range(2,8) for b in range(2)]
    for n,(b,k) in enumerate(ks):
        smf(acc(1,b),M+4*k,opnd(('w',1,b,k),loc))
        if n==3:
            for b2 in range(2):
                a=acc(0,b2)
                p(f'v_pk_add_f32 {V(a,2)}, {V(a,2)}, {V(a+2,2)}\nv_pk_mul_f32 {V(a,2)}, {V(a,2)}, s[38:39]')
            a0,a1=acc(0,0),acc(0,1)
            p(f'v_cvt_pk_bf16_f32 {V(a0+2)}, {V(a0)}, {V(a1)}\nv_cvt_pk_bf16_f32 {V(a0+3)}, {V(a0+1)}, {V(a1+1)}')
            p(f'ds_write2_b32 {V(aQW)}, {V(a0+2)}, {V(a0+3)} offset0:0 offset1:72')
        if n==7:
            p('s_waitcnt lgkmcnt(0)\ns_barrier')
            for s in range(4): p(f'ds_read_b128 {V(QOP+4*s,4)}, {V(aQR)} offset:{64*s}')
            for s in range(4): p(f'ds_read_b128 {V(KB+4*s,4)}, {V(aL16)} offset:{L_KX+1024*s}')
    for o in VFILL[:3]: smf(acc(2,o[2]),M+4*o[3],opnd(o,loc))
    for b2 in range(2):
        a=acc(1,b2); p(f'v_pk_add_f32 {V(a,2)}, {V(a,2)}, {V(a+2,2)}')
    a0,a1=acc(1,0),acc(1,1)
    p(f'v_cvt_pk_bf16_f32 {V(a0+2)}, {V(a0)}, {V(a1)}\nv_cvt_pk_bf16_f32 {V(a0+3)}, {V(a0+1)}, {V(a1+1)}')
    p(f'ds_write2_b32 {V(aKW)}, {V(a0+2)}, {V(a0+3)} offset0:0 offset1:72')
    X0=acc(0,0); X1=acc(0,1); MT=acc(1,1)
    p('s_waitcnt lgkmcnt(1)')
    for s in range(4): mf(X0,KB+4*s,QOP+4*s,None if s==0 else X0)
    for s in range(4): p(f'ds_read_b128 {V(KB+4*s,4)}, {V(aL16)} offset:{L_KX+4096+1024*s}')
    sidx=[0]
    def vstream(n):
        for _ in range(n):
            i=sidx[0]
            if i>=len(STREAM): return
            o=STREAM[i]; buf=VS0 if i%2==0 else VS1
            p('s_waitcnt lgkmcnt(0)')
            smf(acc(2,o[2]),M+4*o[3],V(buf,8))
            if i+2<len(STREAM): ldres(STREAM[i+2],buf)
            sidx[0]+=1
    vstream(2)
    p('s_waitcnt lgkmcnt(0)')
    for s in range(4): mf(X1,KB+4*s,QOP+4*s,None if s==0 else X1)
    p('s_barrier')
    for s in range(4): p(f'ds_read_b128 {V(KB+4*s,4)}, {V(aKR)} offset:{64*s}')
    vstream(2)
    p('s_waitcnt lgkmcnt(0)')
    for s in range(4): mf(MT,KB+4*s,QOP+4*s,None if s==0 else MT)
    p(f'global_store_dwordx4 {V(aL16)}, {V(KB+4*w,4)}, s[34:35] offset:{1024*w} sc1')
    vstream(9)
    VX=QOP
    p(f'ds_read_b128 {V(VX,4)}, {V(aL16)} offset:{L_VX+2048*w}\nds_read_b128 {V(VX+4,4)}, {V(aL16)} offset:{L_VX+2048*w+1024}')
    for b2 in range(2):
        a=acc(2,b2); p(f'v_pk_add_f32 {V(a,2)}, {V(a,2)}, {V(a+2,2)}\nv_cvt_pk_bf16_f32 {V(VPK+b2)}, {V(a)}, {V(a+1)}')
    p(f'global_store_dwordx2 {V(aVP)}, {V(VPK,2)}, s[34:35] sc1')
    p(f's_cmp_eq_u32 s40, 63\ns_cbranch_scc1 L_rec_exit')
    mx=acc(1,0); t1=mx+1
    p(f'v_max3_f32 {V(mx)}, {V(X0)}, {V(X0+1)}, {V(X0+2)}\nv_max3_f32 {V(t1)}, {V(X0+3)}, {V(X1)}, {V(X1+1)}')
    p(f'v_max3_f32 {V(mx)}, {V(mx)}, {V(X1+2)}, {V(X1+3)}\nv_max3_f32 {V(t1)}, {V(t1)}, {V(MT)}, {V(MT+1)}\nv_max_f32 {V(mx)}, {V(mx)}, {V(t1)}')
    xgroup(p,'v_max_f32',V(mx),V(t1))
    for r in [X0+i for i in range(8)]+[MT,MT+1]:
        p(f'v_sub_f32 {V(r)}, {V(r)}, {V(mx)}')
    for r in [X0+i for i in range(8)]+[MT,MT+1]:
        p(f'v_exp_f32 {V(r)}, {V(r)}')
    PX=QOP+8
    for i in range(4): p(f'v_cvt_pk_bf16_f32 {V(PX+i)}, {V(X0+2*i)}, {V(X0+2*i+1)}')
    p(f'v_cvt_pk_bf16_f32 {V(PM)}, {V(MT)}, {V(MT+1)}\nv_cvt_pk_bf16_f32 {V(PM+3)}, {V(MT)}, {V(MT+1)}')
    O0=KB; O1=KB+4; LS=KB+8
    p('s_waitcnt lgkmcnt(0)')
    mf(LS,ONES,PX); mf(O0,VX,PX); mf(O1,VX+4,PX)
    mf16(LS,ONES,PM,LS); mf16(O0,VPK,PM,O0); mf16(O1,VPK,PM+2,O1)
    WA=M
    for i in range(32): p(f'v_mov_b32 {V(WA+i)}, 0')
    p(f'v_rcp_f32 {V(LS)}, {V(LS)}')
    for i in range(8): p(f'v_mul_f32 {V(O0+i)}, {V(O0+i)}, {V(LS)}')
    OP=KB+12
    for r in range(4): p(f'v_cvt_pk_bf16_f32 {V(OP+r)}, {V(O0+r)}, {V(O1+r)}')
    p(f'ds_write_b128 {V(aOW)}, {V(OP,4)} offset:{L_O}')
    p('s_waitcnt lgkmcnt(0)\ns_barrier')
    OA=QOP
    p(f'ds_read_b128 {V(OA,4)}, {V(aOR0)} offset:{L_O}\nds_read_b128 {V(OA+4,4)}, {V(aOR1)} offset:{L_O}')
    p(f's_add_u32 s30, s30, {32*24576}\ns_addc_u32 s31, s31, 0\ns_add_u32 s32, s32, {32*24576}\ns_addc_u32 s33, s33, 0')
    p(f's_mov_b32 m0, {L_KX+2048*w}')
    p(f'global_load_lds_dwordx4 {V(aL16)}, s[30:31] sc1\nglobal_load_lds_dwordx4 {V(aL16)}, s[30:31] offset:1024 sc1')
    p(f's_mov_b32 m0, {L_VX+2048*w}')
    p(f'global_load_lds_dwordx4 {V(aL16)}, s[32:33] sc1\nglobal_load_lds_dwordx4 {V(aL16)}, s[32:33] offset:1024 sc1')
    p('s_waitcnt lgkmcnt(0)')
    PK=ACC
    for ph in range(4):
        for k in range(2):
            for b in range(2): smf(WA+8*ph+4*b,OA+4*k,opnd(('o',ph,b,k),loc))
    for ph in range(4):
        a0=WA+8*ph; a1=a0+4
        p(f'v_pk_add_f32 {V(a0,2)}, {V(a0,2)}, {V(a0+2,2)}\nv_pk_add_f32 {V(a1,2)}, {V(a1,2)}, {V(a1+2,2)}')
        p(f'v_cvt_pk_bf16_f32 {V(PK+2*ph)}, {V(a0)}, {V(a1)}\nv_cvt_pk_bf16_f32 {V(PK+2*ph+1)}, {V(a0+1)}, {V(a1+1)}')
        p(f'global_store_dwordx2 {V(aPST)}, {V(PK+2*ph,2)}, {S(20+2*ph,2)} {st}')
    PA=T; RD=T+8
    p(poll_issue(PA,aINB,0))
    p(f's_add_u32 s34, s34, {32*8192}\ns_addc_u32 s35, s35, 0\ns_add_u32 s36, s36, {32*24576}\ns_addc_u32 s37, s37, 0\ns_add_u32 s40, s40, 1')
    for r in range(4): p(f'v_mov_b32 {V(T+12+r)}, -1')
    p(f'v_xor_b32 {V(T+16)}, 0x2000, {V(aMST)}')
    poll_wait('a',PA,aINB,0,CT,0)
    mf(RD,PA,SEL); mf(RD,PA+4,SEL,RD)
    p(f'v_add_f32 {V(RD)}, {V(RD)}, {V(RD+1)}\nv_add_f32 {V(RD+2)}, {V(RD+2)}, {V(RD+3)}\nv_add_f32 {V(RD)}, {V(RD)}, {V(RD+2)}')
    p(f'v_mov_b32_dpp {V(RD+1)}, {V(RD)} quad_perm:[1,0,3,2] row_mask:0xf bank_mask:0xf\nv_cvt_pk_bf16_f32 {V(RD)}, {V(RD)}, {V(RD+1)}')
    p(f's_mov_b64 exec, s[44:45]\nglobal_store_dword {V(aMST)}, {V(RD)}, s[4:5] {st}\nglobal_store_dword {V(T+16)}, {V(T+12)}, s[4:5] {st}\ns_mov_b64 exec, -1')
    p(f'global_store_dwordx4 {V(aINB)}, {V(T+12,4)}, s[4:5] {st}\nglobal_store_dwordx4 {V(aINB)}, {V(T+12,4)}, s[4:5] offset:1024 {st}')
    p(f'v_xor_b32 {V(aMST)}, 0x2000, {V(aMST)}\nv_xor_b32 {V(aMPL)}, 0x2000, {V(aMPL)}\nv_xor_b32 {V(aINB)}, 0x40000, {V(aINB)}\nv_xor_b32 {V(aPST)}, 0x40000, {V(aPST)}')
    p('s_waitcnt vmcnt(0)')
    p(f's_branch {L}_top')
    for t in tail: p(t)
```

```python
import sys; sys.path.insert(0,'gen')
from build import *
from k_rec import gen_rec
from k_attn import gen_attn
from k_out import gen_out
from k_moe import gen_moea, gen_moeb
ks=[('prep_kernel',128,1024,gen_prep),('moea_kernel',28,65536,gen_moea),('moeb_kernel',8,65536,gen_moeb),('qkv_kernel',256,163840,gen_qkv),('rec_kernel',256,163840,gen_rec),('attn_kernel',256,0,gen_attn),('out_kernel',256,131072,gen_out)]
build(ks,f'cdna_kernels/{NAME}.s')
```

```python
import re

REG_RE = re.compile(r'^(-|\|)?(abs\()?([vas])(\d+|\[(\d+):(\d+)\])\)?\|?$')
TRANS = ('v_exp_f32','v_log_f32','v_rcp_f32','v_rsq_f32','v_sqrt_f32','v_sin_f32','v_cos_f32','v_rcp_iflag_f32')

def regs_of(tok):
    tok = tok.strip()
    if tok in ('vcc',): return {('s',106),('s',107)}
    if tok == 'vcc_lo': return {('s',106)}
    if tok == 'vcc_hi': return {('s',107)}
    if tok == 'exec': return {('s',126),('s',127)}
    if tok == 'exec_lo': return {('s',126)}
    if tok == 'exec_hi': return {('s',127)}
    if tok == 'm0': return {('s',124)}
    m = REG_RE.match(tok)
    if not m: return set()
    f = m.group(3)
    if m.group(5) is not None:
        return {(f,i) for i in range(int(m.group(5)), int(m.group(6))+1)}
    return {(f,int(m.group(4)))}

class Ins:
    __slots__=('text','mn','ops','mods','kind','wr','rd','label','target','states','isdpp','A','B','C','D','wide_data','trans','passes')
    def __init__(self, text):
        self.text=text; self.label=None; self.target=None; self.kind='other'; self.wr=set(); self.rd=set()
        self.states=1; self.isdpp=False; self.A=self.B=self.C=self.D=set(); self.wide_data=set(); self.trans=False; self.passes=0
        t=text.split(';')[0].strip()
        if t.endswith(':'):
            self.kind='label'; self.label=t[:-1]; self.states=0; self.mn=''; return
        if t.startswith('.') or t=='':
            self.kind='dir'; self.states=0; self.mn=''; return
        parts=t.split(None,1); mn=parts[0]; self.mn=mn
        rest=parts[1] if len(parts)>1 else ''
        ops=[]; cur=''; d=0
        for ch in rest:
            if ch in '[(': d+=1
            if ch in '])': d-=1
            if ch==',' and d==0: ops.append(cur.strip()); cur=''
            else: cur+=ch
        if cur.strip(): ops.append(cur.strip())
        mods=''
        if ops:
            last=ops[-1].split(None,1)
            if len(last)>1 and not ops[-1].startswith('hwreg') and not mn.startswith('s_waitcnt'):
                ops[-1]=last[0]; mods=last[1]
        self.ops=ops; self.mods=mods
        R=lambda i: regs_of(ops[i]) if i<len(ops) else set()
        allsrc=lambda k: set().union(*[regs_of(o) for o in ops[k:]]) if len(ops)>k else set()
        if mn.startswith('v_mfma'):
            self.kind='mfma'; self.D=R(0); self.A=R(1); self.B=R(2); self.C=R(3); self.wr=set(self.D); self.rd=self.A|self.B|self.C
            self.passes=8 if '32x32' in mn else 4
        elif mn.startswith('v_smfmac'):
            self.kind='mfma'; self.D=R(0); self.A=R(1); self.B=R(2)|R(3); self.C=R(0); self.wr=set(self.D); self.rd=self.A|self.B|self.C
            self.passes=8 if '32x32' in mn else 4
        elif mn.startswith('v_'):
            self.kind='valu'
            base=mn.replace('_e32','').replace('_e64','').replace('_dpp','').replace('_sdwa','')
            self.trans = base in TRANS
            self.isdpp = mn.endswith('_dpp') or 'quad_perm' in mods or 'row_' in mods
            if base.startswith('v_permlane') or base=='v_swap_b32':
                self.wr=R(0)|R(1); self.rd=R(0)|R(1)
            elif base.startswith('v_cmpx'):
                self.wr=R(0)|regs_of('exec'); self.rd=allsrc(1)
            elif base in ('v_add_co_u32','v_sub_co_u32','v_subrev_co_u32','v_addc_co_u32','v_subb_co_u32','v_mad_u64_u32','v_div_scale_f32'):
                self.wr=R(0)|R(1); self.rd=allsrc(2)
            else:
                self.wr=R(0); self.rd=allsrc(1)
                if base in ('v_fmac_f32','v_dot2c_f32_bf16','v_pk_fmac_f16','v_writelane_b32') or self.isdpp or mn.endswith('_sdwa'):
                    self.rd=self.rd|R(0)
        elif mn.startswith('ds_'):
            self.kind='ds'
            if mn.startswith('ds_read') or mn.startswith('ds_bpermute') or mn.startswith('ds_permute') or mn.startswith('ds_swizzle') or '_rtn' in mn:
                self.wr=R(0); self.rd=allsrc(1)
            else: self.rd=allsrc(0)
        elif mn.startswith('global_') or mn.startswith('buffer_') or mn.startswith('flat_'):
            self.kind='vmem'
            if mn.startswith('global_load_lds') or (mn.startswith('buffer_load') and re.search(r'\blds\b',mods)):
                self.rd=allsrc(0)|regs_of('m0'); self.kind='vmem_lds'
            elif '_load' in mn:
                self.wr=R(0); self.rd=allsrc(1)
            elif '_store' in mn:
                self.rd=allsrc(0)
                if mn.endswith('x3') or mn.endswith('x4'):
                    self.wide_data = R(1) if mn.startswith('global') or mn.startswith('flat') else R(0)
            elif '_atomic' in mn:
                if re.search(r'\bsc0\b',mods) and mn.startswith('global'):
                    self.wr=R(0); self.rd=allsrc(1)
                else: self.rd=allsrc(0)
        elif mn.startswith('s_'):
            self.kind='salu'
            if mn=='s_nop': self.states=int(ops[0],0)+1; self.kind='nop'
            elif mn.startswith('s_cbranch') or mn=='s_branch':
                self.kind='branch'; self.target=ops[0]
            elif mn=='s_endpgm': self.kind='end'
            elif mn.startswith('s_setpc') : self.kind='end'
            elif mn.startswith('s_cmp') or mn.startswith('s_bitcmp') or mn in ('s_waitcnt','s_barrier','s_sleep','s_setprio'):
                self.rd=allsrc(0) if mn!='s_waitcnt' else set()
            elif mn.startswith('s_load') or mn.startswith('s_mem') or mn.startswith('s_buffer_load'):
                self.kind='smem'; self.wr=R(0); self.rd=allsrc(1)
            else:
                self.wr=R(0); self.rd=allsrc(1)
                if 'saveexec' in mn: self.wr=self.wr|regs_of('exec')

EXEC={('s',126),('s',127)}
def vec(rs): return {r for r in rs if r[0]!='s'}
def sca(rs): return {r for r in rs if r[0]=='s'}

def need(p, c):
    n=0
    if p.kind=='valu':
        vw=vec(p.wr); sw=sca(p.wr)
        if c.kind=='mfma':
            if vw & c.rd: n=max(n,2)
            if sw & EXEC: n=max(n,4)
        if c.kind=='valu':
            if p.trans and not c.trans and (vw & c.rd): n=max(n,1)
            if p.trans and c.trans and (vw & c.rd): n=max(n,1)
            if c.mn.startswith('v_permlane') and (vw & c.rd): n=max(n,2)
            if c.isdpp and (vw & c.rd): n=max(n,2)
            if (c.mn.startswith('v_readlane') or c.mn.startswith('v_readfirstlane')) and (vw & c.rd): n=max(n,1)
            if (sw-EXEC) & c.rd:
                n=max(n,4 if (c.mn.startswith('v_readlane') or c.mn.startswith('v_writelane')) else 2)
            if sw & EXEC:
                if c.isdpp: n=max(n,5)
                if c.mn.startswith('v_permlane') or c.mn.startswith('v_read') or c.mn.startswith('v_writelane'): n=max(n,4)
                if EXEC & c.rd: n=max(n,2)
            if (p.mn.endswith('_sdwa') or 'op_sel' in p.mods) and (vw & (c.rd|c.wr)): n=max(n,1)
        if p.mn.startswith('v_dot') and c.kind in ('valu','mfma','vmem','vmem_lds','ds'):
            if c.mn==p.mn:
                ab=set().union(*[regs_of(o) for o in c.ops[1:3]])
                if vw & ab: n=max(n,3)
            elif vw & (c.rd|c.wr): n=max(n,3)
        if c.kind in ('vmem','vmem_lds','ds'):
            if (sw-EXEC) & c.rd: n=max(n,5)
            if p.trans and (vw & c.rd): n=max(n,1)
    elif p.kind=='mfma':
        big={4:8,8:12}[p.passes]; ovl={4:6,8:10}[p.passes]; war={4:3,8:7}[p.passes]
        if c.kind=='mfma':
            if p.D & (c.A|c.B): n=max(n,big)
            if p.D & c.C:
                if not (p.D==c.C and p.mn==c.mn): n=max(n,ovl)
            elif p.D & c.D: n=max(n,ovl)
        elif c.kind in ('valu','ds','vmem','vmem_lds'):
            if p.D & (c.rd|c.wr): n=max(n,big)
            if c.kind=='valu' and (p.C & c.wr): n=max(n,war)
    elif p.kind=='salu':
        if ('s',124) in p.wr and c.kind=='vmem_lds': n=max(n,1)
    if p.wide_data and (p.wide_data & c.wr):
        n=max(n,2 if c.kind in ('valu','mfma') else 1)
    return n

class Prog:
    def __init__(self): self.lines=[]; self.timed=True
    def __call__(self, text):
        for l in text.split('\n'):
            l=l.strip()
            if l: self.lines.append(l)
    def nops(self, n):
        while n>0:
            k=min(n,16); self(f's_nop {k-1}'); n-=k
    def fix(self, verbose=False):
        ins=[Ins(l) for l in self.lines]
        inserted=0
        changed=True
        while changed:
            changed=False
            lab={x.label:i for i,x in enumerate(ins) if x.kind=='label'}
            add={}
            for i,p in enumerate(ins):
                if p.kind not in ('valu','mfma','salu','vmem'): continue
                if p.kind=='salu' and ('s',124) not in p.wr: continue
                if p.kind=='vmem' and not p.wide_data: continue
                lim=12 if p.kind=='mfma' else 5
                full=lambda x: x.kind=='mfma' and x.passes==4 and '16x16x16' not in x.mn
                stack=[(i+1,0,-1 if full(p) else None)]; seen=set()
                while stack:
                    j,dist,lm=stack.pop()
                    while j<len(ins) and dist<lim:
                        if (j,dist,lm) in seen: break
                        seen.add((j,dist,lm))
                        c=ins[j]
                        if c.kind in ('label','dir'): j+=1; continue
                        if c.kind=='end': break
                        if self.timed and full(c) and lm is not None: dist=max(dist,lm+4)
                        n=need(p,c)
                        if n>dist:
                            add[j]=max(add.get(j,0), n-dist)
                        if c.kind=='mfma': lm=dist if full(c) else None
                        dist+=c.states
                        if c.kind=='branch':
                            if c.target in lab: stack.append((lab[c.target],dist,lm))
                            if c.mn=='s_branch': break
                        j+=1
            if add:
                j=min(add)
                last=-100; new=[]; todo={}
                for j in sorted(add):
                    if j-last>24: todo[j]=add[j]; last=j
                for k,x in enumerate(ins):
                    if k in todo:
                        new.append(Ins(f's_nop {todo[k]-1}')); inserted+=todo[k]
                        if verbose: print('pad',todo[k],'before',x.text)
                    new.append(x)
                ins=new; changed=True
        self.inserted=inserted
        return '\n'.join(x.text for x in ins)+'\n'

def kd(name, vgpr=512, sgpr=102, accum=256):
    return f'''.amdhsa_kernel {name}
  .amdhsa_next_free_vgpr {vgpr}
  .amdhsa_next_free_sgpr {sgpr}
  .amdhsa_accum_offset {accum}
  .amdhsa_group_segment_fixed_size 0
  .amdhsa_kernarg_size 120
  .amdhsa_user_sgpr_count 2
  .amdhsa_user_sgpr_kernarg_segment_ptr 1
  .amdhsa_system_sgpr_workgroup_id_x 1
  .amdhsa_float_denorm_mode_32 3
.end_amdhsa_kernel
'''

def lin(p, dst, fn, tmp, src='v0', nbits=8):
    c0=fn(0)
    masks=[fn(1<<i)^c0 for i in range(nbits)]
    for t in range(1<<nbits):
        v=c0
        for i in range(nbits):
            if t>>i&1: v^=masks[i]
        assert v==fn(t), ('not linear',t,v,fn(t))
    p(f'v_mov_b32 {dst}, {c0:#x}')
    for i,m in enumerate(masks):
        if m:
            p(f'v_bfe_i32 {tmp}, {src}, {i}, 1')
            p(f'v_and_b32 {tmp}, {m:#x}, {tmp}')
            p(f'v_xor_b32 {dst}, {dst}, {tmp}')
```

```python
from asmlib import *
import math
NAME='parallel_sum__memory_aug_recurrent_mem_tr__moe_arch_mod__prompt'
KA_X,KA_MEM0,KA_WQ,KA_WK,KA_WV,KA_WO,KA_SEG,KA_BX,KA_WR,KA_WG,KA_WU,KA_WD,KA_OUT,KA_DBG,KA_WS = [8*i for i in range(15)]
WS_XNF   = 0x0
WS_KEY   = 0x200000
WS_RINGA = 0x300000
WS_RINGB = 0x380000
WS_MOE_H = 0x390000
WS_MOE_Y = 0x398000
WS_FLAGS = 0x3A0000
WS_QKV   = 0x1000000
WS_KVM   = 0x4100000
WS_OF    = 0x5200000
QSCALE = math.log2(math.e)/math.sqrt(128.0)
import struct
def f32(x): return '0x%08x'%struct.unpack('<I',struct.pack('<f',x))[0]

def V(i,n=1): return f'v{i}' if n==1 else f'v[{i}:{i+n-1}]'
def A(i,n=1): return f'a{i}' if n==1 else f'a[{i}:{i+n-1}]'
def S(i,n=1): return f's{i}' if n==1 else f's[{i}:{i+n-1}]'
def R(i,n=1):
    if i>=256: return A(i-256,n)
    assert i+n<=256
    return V(i,n)

def xgroup(p, op, x, t):
    p(f'v_mov_b32 {t}, {x}')
    p(f'v_permlane32_swap_b32 {x}, {t}')
    p(f'{op} {x}, {x}, {t}')
    p(f'v_mov_b32 {t}, {x}')
    p(f'v_permlane16_swap_b32 {x}, {t}')
    p(f'{op} {x}, {x}, {t}')

def bit(x,i): return (x>>i)&1
PATS={
 'D' : dict(f=lambda r: bit(r,0)|bit(r,1)<<1|bit(r,3)<<2, rl=lambda r,gb: r+8*gb),
 'S' : dict(f=lambda r: bit(r,0)|bit(r,2)<<1|bit(r,4)<<2, rl=lambda r,gb: 16*(r%2)+r//2+4*gb),
 'So': dict(f=lambda r: bit(r,1)|bit(r,2)<<1|bit(r,4)<<2, rl=lambda r,gb: 16*(r%2)+4*(r//2)+8*(gb//2)+2*(gb%2)),
}
def dma_src_fn(pat,stride):
    f=PATS[pat]['f']
    def fn(t):
        w=t>>6; l=t&63; rho=32*w+(l>>4); y=(l&15)>>1
        return rho*stride + ((y^f(l>>4))*32) + (l&1)*16
    return fn
def rd_fn(pat):
    f=PATS[pat]['f']; rl=PATS[pat]['rl']
    def fn(t):
        w=t>>6; l=t&63; r=(l&15)>>2; gb=l>>4; rho=rl(r,gb)
        return rho*256 + (((2*w)^f(rho))*32) + (l&3)*8
    return fn

def load_chunks(p, chunks, s_w8k, vt, tag, pre_hook=None):
    srcreg={}; rdreg={}
    n=0
    for ch in chunks:
        k=(ch['pat'],ch['stride'])
        if k not in srcreg:
            srcreg[k]=V(vt+n); lin(p,srcreg[k],dma_src_fn(*k),V(vt+7)); n+=1
    for ch in chunks:
        k=ch['pat']
        if k not in rdreg:
            rdreg[k]=V(vt+n); lin(p,rdreg[k],rd_fn(k),V(vt+7)); n+=1
    assert n<=4
    t0,t1,t2=V(vt+4),V(vt+5),V(vt+6)
    def issue(i):
        ch=chunks[i]; f=PATS[ch['pat']]['f']; buf=i%4
        for jj in range(8):
            x=f(4*jj)*32
            p(f's_add_u32 m0, {s_w8k}, {buf*32768+jj*1024:#x}')
            p(f'v_xor_b32 {t0}, {x:#x}, {srcreg[(ch["pat"],ch["stride"])]}')
            p(f'v_add_u32 {t0}, {(ch["row0"]+4*jj)*ch["stride"]+ch.get("coff",0):#x}, {t0}')
            p(f'global_load_lds_dwordx4 {t0}, {ch["sbase"]}')
    N=len(chunks)
    for i in range(min(3,N)): issue(i)
    if pre_hook: pre_hook()
    for i in range(N):
        ch=chunks[i]; buf=i%4
        inflight=min(N-1-i,2)
        p(f's_waitcnt vmcnt({8*inflight})')
        p('s_barrier')
        if i+3<N: issue(i+3)
        hi=(buf//2)*65536
        p(f'v_add_u32 {t1}, {hi:#x}, {rdreg[ch["pat"]]}')
        p(f'v_xor_b32 {t2}, 32, {t1}')
        def emit_reads(reads,post):
            for (dst,rho_s,b) in reads:
                assert PATS[ch['pat']]['f'](rho_s)==0
                p(f'ds_read_b64_tr_b16 {dst}, {t2 if b else t1} offset:{rho_s*256+(buf%2)*32768}')
            p('s_waitcnt lgkmcnt(0)')
            if post: post()
        if 'wreads' in ch:
            for w in range(1,4): p(f's_cmp_eq_u32 {s_w8k}, {w*8192}\ns_cbranch_scc1 L_{tag}_c{i}w{w}')
            for w in range(4):
                p(f'L_{tag}_c{i}w{w}:')
                emit_reads(*ch['wreads'][w])
                if w<3: p(f's_branch L_{tag}_c{i}e')
            p(f'L_{tag}_c{i}e:')
        else: emit_reads(ch['reads'],ch.get('post'))
        if 'hook' in ch: ch['hook']()
    p('s_barrier')
```

```python
from common import *
def attn_setup(p):
    lin(p,'v1',lambda t:(t&63)*16,'v3'); lin(p,'v2',lambda t:(t&63)*16+4096,'v3')
    p('v_and_b32 v3, 15, v0\nv_bfe_u32 v12, v0, 4, 2\nv_lshlrev_b32 v12, 2, v12')
    for r in range(4):
        p(f'v_add_u32 v13, {r}, v12\nv_cmp_gt_u32 {S(60+2*r,2)}, v13, v3')
    for r in range(4): p(f'v_mov_b32 {V(4+r)}, 0x3f803f80')
    for r in range(6): p(f'v_mov_b32 {V(PMA+r)}, 0')
    p('v_mov_b32 v3, 0xff800000')
KF=16; QF=48; VF=80; KM=112; VM=208; X0=136; X1=140; MT=144; PX=148; LS=152; O=156; OP=188; MX=204; PMA=128
def attn_loads_qkv(p, sb, ld=''):
    for part,reg in ((0,KF),(2,QF),(1,VF)):
        for half in range(2):
            p(f'v_add_u32 v13, {part*8192+half*4096}, v1')
            for i in range(4): p(f'global_load_dwordx4 {V(reg+16*half+4*i,4)}, v13, {sb} offset:{1024*i} {ld}')
def attn_loads_mem(p, sb, ld=''):
    for i in range(4): p(f'global_load_dwordx4 {V(KM+4*i,4)}, v1, {sb} offset:{1024*i} {ld}')
    for i in range(4): p(f'global_load_dwordx4 {V(VM+4*i,4)}, v2, {sb} offset:{1024*i} {ld}')
def attn_compute(p, so, st=''):
    def mf(d,a,b,c=None): p(f'v_mfma_f32_16x16x32_bf16 {V(d,4)}, {V(a,4)}, {V(b,4)}, {V(c,4) if c is not None else 0}')
    def mf16(d,a,b,c): p(f'v_mfma_f32_16x16x16_bf16 {V(d,4)}, {V(a,2)}, {V(b,2)}, {V(c,4)}')
    for qt in range(2):
        q=QF+16*qt
        for s in range(4):
            mf(X0,KF+4*s,q+4*s,None if s==0 else X0)
            if qt: mf(X1,KF+16+4*s,q+4*s,None if s==0 else X1)
            mf(MT,KM+4*s,q+4*s,None if s==0 else MT)
        D=X1 if qt else X0
        for r in range(4): p(f'v_cndmask_b32 {V(D+r)}, {V(D+r)}, v3, {S(60+2*r,2)}')
        p(f'v_max3_f32 {V(MX)}, {V(X0)}, {V(X0+1)}, {V(X0+2)}\nv_max3_f32 {V(MX+1)}, {V(X0+3)}, {V(MT)}, {V(MT+1)}')
        if qt: p(f'v_max3_f32 {V(MX)}, {V(MX)}, {V(X1)}, {V(X1+1)}\nv_max3_f32 {V(MX+1)}, {V(MX+1)}, {V(X1+2)}, {V(X1+3)}')
        p(f'v_max_f32 {V(MX)}, {V(MX)}, {V(MX+1)}')
        xgroup(p,'v_max_f32',V(MX),V(MX+1))
        regs=[X0+i for i in range(8 if qt else 4)]+[MT,MT+1]
        for r in regs: p(f'v_sub_f32 {V(r)}, {V(r)}, {V(MX)}')
        for r in regs: p(f'v_exp_f32 {V(r)}, {V(r)}')
        for i in range(4):
            if qt or i<2: p(f'v_cvt_pk_bf16_f32 {V(PX+i)}, {V(X0+2*i)}, {V(X0+2*i+1)}')
            else: p(f'v_mov_b32 {V(PX+i)}, 0')
        p(f'v_cvt_pk_bf16_f32 {V(PMA+2)}, {V(MT)}, {V(MT+1)}')
        mf(LS,4,PX)
        for et in range(8): mf(O+4*et,VF+4*et,PX)
        mf(LS,4,PMA+2,LS)
        for et in range(8): mf(O+4*et,VM+4*(et//2),PMA+2-2*(et%2),O+4*et)
        p(f'v_rcp_f32 {V(LS)}, {V(LS)}')
        if qt: p('v_add_u32 v13, 0x20000, v1')
        for s in range(4):
            for i in range(8): p(f'v_mul_f32 {V(O+8*s+i)}, {V(O+8*s+i)}, {V(LS)}')
            for i in range(4): p(f'v_cvt_pk_bf16_f32 {V(OP+4*s+i)}, {V(O+8*s+2*i)}, {V(O+8*s+2*i+1)}')
            p(f'global_store_dwordx4 {"v13" if qt else "v1"}, {V(OP+4*s,4)}, {so} offset:{1024*s} {st}')
def gen_attn(p):
    p('.p2align 8\nattn_kernel:')
    p('s_cmp_ge_u32 s2, 256\ns_cbranch_scc1 L_attn_exit')
    p(f's_load_dwordx2 s[4:5], s[0:1], {KA_WS}')
    p('v_lshrrev_b32 v1, 6, v0\nv_readfirstlane_b32 s14, v1')
    attn_setup(p)
    p('s_lshl_b32 s12, s2, 2\ns_add_u32 s12, s12, s14')
    p('s_waitcnt lgkmcnt(0)')
    p('L_attn_loop:')
    p(f's_mul_i32 s13, s12, 24576\ns_add_u32 s13, s13, {WS_QKV:#x}\ns_add_u32 s6, s4, s13\ns_addc_u32 s7, s5, 0')
    p(f's_lshl_b32 s13, s12, 13\ns_add_u32 s13, s13, {WS_KVM:#x}\ns_add_u32 s8, s4, s13\ns_addc_u32 s9, s5, 0')
    p(f's_lshr_b32 s13, s12, 5\ns_lshl_b32 s13, s13, 18\ns_and_b32 s3, s12, 31\ns_lshl_b32 s3, s3, 12\ns_add_u32 s13, s13, s3\ns_add_u32 s13, s13, {WS_OF:#x}\ns_add_u32 s10, s4, s13\ns_addc_u32 s11, s5, 0')
    attn_loads_qkv(p,'s[6:7]'); attn_loads_mem(p,'s[8:9]')
    p('s_waitcnt vmcnt(0)')
    attn_compute(p,'s[10:11]')
    p('s_add_u32 s12, s12, 1024\ns_cmp_lt_u32 s12, 2048\ns_cbranch_scc1 L_attn_loop')
    p('L_attn_exit:\ns_endpgm')
```

```python
from common import *
L_KX=0
L_VX=16384; L_MEM=24576
L_QK=32768
L_O=37888; L_SEL=39936
L_RES=40960
assert L_QK+4864<=L_O and L_RES+15*8192==163840
aKX=0; IDX=1; TMP=2; ONES=6; PM=10; VPK=16
aL16=20; aL16b=21; aL16c=22; aPST=23; aINB=24; aMST=25; aMPL=26; aQW=27; aQKR=28; aOW=29; aOR0=30; aOR1=31
M=32; ACC=64; T=88
def acc(m,b): return ACC+(m*2+b)*4
ALLOPS=[('w',m,b,k) for m in range(3) for b in range(2) for k in range(8)]+[('o',ph,b,k) for ph in range(4) for b in range(2) for k in range(2)]
GO=[('w',m,b,k) for m in range(3) for k in range(2) for b in range(2)]
QO=[('w',0,b,k) for k in range(2,8) for b in range(2)]
KO=[('w',1,b,k) for k in range(2,8) for b in range(2)]
VF=[('w',2,b,k) for k in range(2,8) for b in range(2)]
RES=GO[:8]+QO[9:12]+GO[8:]
REGOPS=[o for o in ALLOPS if o not in RES]
assert len(RES)==15 and len(REGOPS)==49
OPREG={o:120+8*i for i,o in enumerate(REGOPS)}
DEF=dict(idlefirst=[0,0,0,1], dA=[100,120,160,240], gapA=[0,0,0,0], dB=[180,180,180,180], gapB=[80,80,80,80], posB=[11,11,11,5], stamps=False, total=False)
SEGB=32*24576

def gen_rec(p, **kw):
    P=dict(DEF); P.update(kw)
    p('.p2align 8\nrec_kernel:')
    p('s_cmp_ge_u32 s2, 256\ns_cbranch_scc1 L_rec_exit')
    p('s_and_b32 s3, s2, 7\ns_cmp_lg_u32 s3, 0\ns_cbranch_scc1 L_rec_exit')
    rec_role(p,P)
    p('L_rec_exit:\ns_endpgm')

def rec_role(p,P):
    p(f's_load_dwordx2 s[4:5], s[0:1], {KA_WS}\ns_load_dwordx2 s[6:7], s[0:1], {KA_WQ}\ns_load_dwordx2 s[8:9], s[0:1], {KA_WK}\ns_load_dwordx2 s[10:11], s[0:1], {KA_WV}')
    p(f's_load_dwordx2 s[16:17], s[0:1], {KA_WO}\ns_load_dwordx2 s[18:19], s[0:1], {KA_MEM0}\ns_load_dwordx2 s[28:29], s[0:1], {KA_DBG}')
    p('s_lshr_b32 s12, s2, 3')
    p('v_lshrrev_b32 v1, 6, v0\nv_readfirstlane_b32 s14, v1\ns_lshl_b32 s15, s14, 13')
    p('s_waitcnt lgkmcnt(0)')
    p('s_lshl_b32 s13, s12, 8')
    for k in (6,8,10): p(f's_add_u32 s{k}, s{k}, s13\ns_addc_u32 s{k+1}, s{k+1}, 0')
    p('s_lshl_b32 s13, s12, 17\ns_add_u32 s16, s16, s13\ns_addc_u32 s17, s17, 0')
    tmp='v2'
    def init_comm():
        lin(p,V(aL16),lambda t:(t&63)*16,tmp)
        p(f'v_add_u32 {V(aL16b)}, 0x10000, {V(aL16)}\nv_add_u32 {V(aL16c)}, 0x20000, {V(aL16)}')
        def pst(t):
            w=t>>6; c=t&15; g=(t>>4)&3; u=8*w+4*(c>>3)+g
            return WS_RINGA+u*2048+(c&7)*8
        lin(p,V(aPST),pst,tmp); p(f's_lshl_b32 s13, s12, 6\nv_add_u32 {V(aPST)}, s13, {V(aPST)}')
        lin(p,V(aINB),lambda t:WS_RINGA+(t>>6)*65536+(t&63)*16,tmp); p(f's_lshl_b32 s13, s12, 11\nv_add_u32 {V(aINB)}, s13, {V(aINB)}')
        lin(p,V(aMST),lambda t:WS_RINGB+(t>>6)*2048+((t>>4)&3)*16+(t&3)*4,tmp); p(f's_lshl_b32 s13, s12, 6\nv_add_u32 {V(aMST)}, s13, {V(aMST)}')
        lin(p,V(aMPL),lambda t:WS_RINGB+(t>>6)*2048+(t&63)*16,tmp)
        for r in range(4): p(f'v_mov_b32 {V(VPK+r)}, -1')
        p(f'v_xor_b32 v3, 0x40000, {V(aINB)}')
        for a in (V(aINB),'v3'):
            for off in (0,1024): p(f'global_store_dwordx4 {a}, {V(VPK,4)}, s[4:5] offset:{off} sc1')
        for sl in range(4): p(f'v_xor_b32 v4, {sl*0x2000}, {V(aMST)}\nglobal_store_dword v4, {V(VPK)}, s[4:5] sc1')
        def m0l(t):
            w=t>>6; pc=t&3; g=(t>>4)&3
            return ((g&1)*512 + 128*w + 2*pc + (g>>1))*2
        lin(p,'v5',m0l,tmp)
        p('s_and_b32 s13, s12, 3\ns_lshl_b32 s13, s13, 11')
        p('s_lshr_b32 s20, s12, 3\ns_lshl_b32 s20, s20, 6\ns_add_u32 s13, s13, s20')
        p('s_bfe_u32 s20, s12, 0x10002\ns_lshl_b32 s20, s20, 4\ns_add_u32 s13, s13, s20')
        p('v_add_u32 v5, s13, v5')
        p(f'global_load_ushort {V(aOR1)}, v5, s[18:19]\nglobal_load_ushort {V(aOR0)}, v5, s[18:19] offset:32')
        p('s_lshl_b32 s13, s14, 11\n'+f'v_add_u32 v3, s13, {V(aL16)}\nv_add_u32 v4, s13, {V(aL16b)}\nv_add_u32 v5, s13, {V(aL16c)}')
    def arrive(stage):
        def f():
            p(f's_cmp_lg_u32 s14, 0\ns_cbranch_scc1 L_rec_noarr{stage}')
            p('s_mov_b64 exec, 1\nv_mov_b32 v14, 0')
            if stage==0:
                p('s_getreg_b32 s13, hwreg(HW_REG_XCC_ID, 0, 4)\ns_lshl_b32 s13, 1, s13\nv_mov_b32 v15, s13\nglobal_atomic_or v14, v15, s[28:29] offset:4')
            else:
                p('v_mov_b32 v15, 1\nglobal_atomic_add v14, v15, s[28:29]')
            p(f's_mov_b64 exec, -1\nL_rec_noarr{stage}:')
        return f
    HOLD={o:32+8*i for i,o in enumerate(RES[:11])}
    def res_write(o,reg):
        a=L_RES+RES.index(o)*8192
        p(f'ds_write_b128 {V(3+a//65536)}, {V(reg,4)} offset:{a%65536}\nds_write_b128 {V(3+a//65536)}, {V(reg+4,4)} offset:{a%65536+1024}')
    def reads_of(ops,isw):
        reads=[]
        for n,o in enumerate(ops):
            d=OPREG.get(o,HOLD.get(o,32+8*n)); kl=o[3]%2
            for q in range(4): reads.append((R(d+2*q,2),64*kl+32*(q//2)+(2*(q%2) if isw else (q%2)),o[2]))
        return reads
    chunks=[]
    def wchunks(m,sb):
        for c in range(4):
            wr=[]
            for w in range(4):
                j=(c-w)%4; ops=[('w',m,b,2*j+kl) for b in range(2) for kl in range(2)]
                post=None
                if ops[0] in RES[11:]:
                    def post(ops=ops):
                        for n,o in enumerate(ops): res_write(o,32+8*n)
                        p('s_waitcnt lgkmcnt(0)')
                wr.append((reads_of(ops,True),post))
            chunks.append(dict(wreads=wr,sbase=sb,row0=128*c,stride=8192,pat='S'))
    for ph in range(4):
        chunks.append(dict(reads=reads_of([('o',ph,b,k) for b in range(2) for k in range(2)],False),sbase='s[16:17]',row0=0,stride=1024,pat='So',coff=256*ph))
    wchunks(2,'s[10:11]'); wchunks(0,'s[6:7]'); wchunks(1,'s[8:9]')
    chunks[3]['hook']=arrive(0); chunks[7]['hook']=arrive(1)
    load_chunks(p,chunks,'s15',6,'rec',pre_hook=init_comm)
    for o in RES[:11]: res_write(o,HOLD[o])
    p('s_waitcnt lgkmcnt(0)')
    tmp=V(T+8)
    p(f'v_lshlrev_b32 {V(TMP)}, 16, {V(aOR0)}\nv_or_b32 {V(TMP)}, {V(TMP)}, {V(aOR1)}')
    lin(p,V(IDX),lambda t:0xEEEE if (t>>1)&1 else 0x4444,tmp)
    p(f'v_and_b32 {V(T)}, 1, v0\nv_lshlrev_b32 {V(T)}, 4, {V(T)}\nv_mov_b32 {V(T+1)}, 0x3f80\nv_lshlrev_b32 {V(T+1)}, {V(T)}, {V(T+1)}')
    p(f'v_bfe_u32 {V(T+2)}, v0, 2, 2')
    for r in range(4): p(f'v_cmp_eq_u32 vcc, {r}, {V(T+2)}\nv_cndmask_b32 {V(T+4+r)}, 0, {V(T+1)}, vcc')
    p(f'ds_write_b128 {V(aL16)}, {V(T+4,4)} offset:{L_SEL}')
    for r in range(4): p(f'v_mov_b32 {V(ONES+r)}, 0x3f803f80\nv_mov_b32 {V(VPK+r)}, 0')
    for r in range(6): p(f'v_mov_b32 {V(PM+r)}, 0')
    lin(p,V(aQW),lambda t:((t>>6)*16+(t&15))*4,tmp)
    p(f'v_bfe_u32 {V(T)}, v0, 4, 2\nv_mul_u32_u24 {V(T)}, 1216, {V(T)}\nv_add_u32 {V(aQW)}, {V(aQW)}, {V(T)}\nv_add_u32 {V(aQW)}, {L_QK}, {V(aQW)}')
    lin(p,V(aQKR),lambda t:((t>>4)&3)*16,tmp)
    p(f'v_bfe_u32 {V(T)}, v0, 2, 2\nv_mul_u32_u24 {V(T)}, 1216, {V(T)}\nv_and_b32 {V(T+1)}, 1, v0\nv_mul_u32_u24 {V(T+1)}, 288, {V(T+1)}\nv_add3_u32 {V(aQKR)}, {V(aQKR)}, {V(T)}, {V(T+1)}\nv_add_u32 {V(aQKR)}, {L_QK}, {V(aQKR)}')
    sw=lambda i: bit(i,1)|bit(i,0)<<1|bit(i,2)<<2|bit(i,1)<<3
    irow=lambda c: 2*(c>>2)+(c&1)
    lin(p,V(aOW),lambda t:irow(t&15)*256+((4*(t>>6)+((t>>4)&3))^sw(irow(t&15)))*16,tmp)
    lin(p,V(aOR0),lambda t:irow(t&15)*256+((2*((t>>4)&3)+((t>>1)&1))^sw(irow(t&15)))*16,tmp)
    p(f'v_xor_b32 {V(aOR1)}, 128, {V(aOR0)}')
    for ph in range(4): p(f's_add_u32 s{20+2*ph}, s4, {ph*65536}\ns_addc_u32 s{21+2*ph}, s5, 0')
    p(f's_mul_i32 s13, s12, 24576\ns_add_u32 s13, s13, {WS_QKV:#x}\ns_lshl_b32 s42, s14, 11\ns_add_u32 s13, s13, s42')
    p('s_add_u32 s30, s4, s13\ns_addc_u32 s31, s5, 0\ns_add_u32 s32, s30, 8192\ns_addc_u32 s33, s31, 0')
    p('s_mov_b32 s40, 0\ns_mov_b32 s41, 0x400000')
    if 'kv_wait' in P: P['kv_wait'](p,first=True)
    p(f's_mov_b32 m0, s42\ns_mov_b32 s43, 0x6000')
    p(f'global_load_lds_dwordx4 {V(aL16)}, s[30:31] sc1\nglobal_load_lds_dwordx4 {V(aL16)}, s[30:31] offset:1024 sc1')
    p(f's_add_u32 m0, s42, {L_VX}')
    p(f'global_load_lds_dwordx4 {V(aL16)}, s[32:33] sc1\nglobal_load_lds_dwordx4 {V(aL16)}, s[32:33] offset:1024 sc1')
    p(f's_add_u32 s30, s30, {SEGB}\ns_addc_u32 s31, s31, 0\ns_add_u32 s32, s32, {SEGB}\ns_addc_u32 s33, s33, 0\ns_xor_b32 s42, s42, 8192')
    p(f'v_mov_b32 {V(aKX)}, {V(aL16)}')
    p(f's_lshl_b32 s13, s12, 13\ns_add_u32 s13, s13, {WS_KVM+4096-32*8192:#x}\ns_add_u32 s34, s4, s13\ns_addc_u32 s35, s5, 0')
    p(f's_mov_b32 s38, {f32(QSCALE)}\ns_mov_b32 s39, {f32(2.0**24)}')
    p('s_mov_b32 s44, 0x000f000f\ns_mov_b32 s45, 0x000f000f')
    if P['stamps']:
        for i in range(48,102): p(f's_mov_b32 s{i}, 0')
    if P.get('series'): p(f's_lshl_b32 s58, s12, 2\ns_add_u32 s58, s58, s14\ns_lshl_b32 s58, s58, 8\ns_add_u32 s58, s58, {WS_FLAGS+0x20000:#x}')
    p(f'v_xor_b32 {V(aINB)}, 0x40000, {V(aINB)}')
    p(f'v_mov_b32 {V(T)}, 0')
    p('L_rec_tb:')
    p(f'global_load_dwordx2 {V(T+2,2)}, {V(T)}, s[28:29] sc1\ns_waitcnt vmcnt(0)')
    p(f'v_readfirstlane_b32 s3, {V(T+2)}\nv_readfirstlane_b32 s13, {V(T+3)}')
    p('s_cmp_ge_u32 s3, 32\ns_cbranch_scc1 L_rec_tbok\ns_sleep 4\ns_sub_u32 s41, s41, 1\ns_cbranch_scc0 L_rec_tb\ns_mov_b32 s41, 0')
    p('L_rec_tbok:')
    p('s_bcnt1_i32_b32 s13, s13\ns_cmp_eq_u32 s13, 1\ns_cbranch_scc0 L_rec_slow')
    for mode,st in (('f',''),('s','sc1')):
        if mode=='s': p('L_rec_slow:')
        p(f's_mov_b64 exec, s[44:45]\nglobal_store_dword {V(aMST)}, {V(TMP)}, s[4:5] {st}\ns_mov_b64 exec, -1')
        p(f'v_xor_b32 {V(aMST)}, 0x2000, {V(aMST)}')
        for w in range(1,4): p(f's_cmp_eq_u32 s14, {w}\ns_cbranch_scc1 L_rec_{mode}{w}')
        for w in range(4): body(p,w,mode,st,P)
    p('L_rec_done:')
    if P['total']:
        p(f's_memtime s[52:53]\ns_memrealtime s[54:55]\ns_waitcnt lgkmcnt(0)\ns_sub_u32 s52, s52, s48\ns_sub_u32 s54, s54, s50')
        p(f's_lshl_b32 s3, s12, 2\ns_add_u32 s3, s3, s14\ns_lshl_b32 s3, s3, 3\ns_add_u32 s3, s3, {WS_FLAGS+0x10000:#x}\nv_mov_b32 v2, s3\nv_mov_b32 v4, s52\nv_mov_b32 v5, s54\nglobal_store_dwordx2 v2, v[4:5], s[4:5]')
    if P['stamps']:
        p(f's_lshl_b32 s3, s12, 2\ns_add_u32 s3, s3, s14\ns_lshl_b32 s3, s3, 7\ns_add_u32 s3, s3, {WS_FLAGS+0x10000:#x}\nv_mov_b32 v2, s3')
        p('s_waitcnt lgkmcnt(0)')
        for i in range(29): p(f'v_mov_b32 v3, s{48+i if i<4 else 52+2*(i-4)}\nglobal_store_dword v2, v3, s[4:5] offset:{4*i}')
        global NAMES; NAMES=P['names']

def body(p,w,mode,st,P):
    L=f'L_rec_{mode}{w}'
    tail=[]; names=[]; P['names']=names
    loc=dict(OPREG)
    def stamp(i):
        if P['stamps'] and (not P.get('only') or i in P['only'] or i=='join2'):
            k=len(names); names.append(i); assert k<25
            p(f'{"s_memrealtime" if P["stamps"]==2 else "s_memtime"} s[{52+2*k}:{53+2*k}]')
    def cnt(i): return f's_add_u32 s{48+i}, s{48+i}, 1' if P['stamps'] else ''
    def S_(o): return f'v_smfmac_f32_16x16x64_bf16 {V(acc(o[1],o[2]),4)}, {V(M+4*o[3],4)}, {R(loc[o],8)}, {V(IDX)}'
    def mf(d,a,b,c=None): return f'v_mfma_f32_16x16x32_bf16 {V(d,4)}, {V(a,4)}, {V(b,4)}, {V(c,4) if c is not None else 0}'
    def ldres(o,reg):
        a=L_RES+RES.index(o)*8192+w*2048; base=V(aL16+a//65536); off=a%65536
        loc[o]=reg
        return f'ds_read_b128 {V(reg,4)}, {base} offset:{off}\nds_read_b128 {V(reg+4,4)}, {base} offset:{off+1024}'
    def poll_issue(reg,addr):
        return f'global_load_dwordx4 {V(reg,4)}, {V(addr)}, s[4:5] sc1\nglobal_load_dwordx4 {V(reg+4,4)}, {V(addr)}, s[4:5] offset:1024 sc1'
    def chk(reg):
        t=TMP
        return '\n'.join([f'v_max3_u32 {V(t)}, {V(reg)}, {V(reg+1)}, {V(reg+2)}',f'v_max3_u32 {V(t+1)}, {V(reg+3)}, {V(reg+4)}, {V(reg+5)}',f'v_max3_u32 {V(t)}, {V(t)}, {V(reg+6)}, {V(reg+7)}',f'v_max_u32 {V(t)}, {V(t)}, {V(t+1)}',f'v_cmp_eq_u32 vcc, -1, {V(t)}'])
    def delay(c): p.nops(c//4)
    add=lambda d,a,b: f'v_add_f32 {V(d)}, {V(a)}, {V(b)}'
    cvt=lambda d,a,b: f'v_cvt_pk_bf16_f32 {V(d)}, {V(a)}, {V(b)}'
    ex=lambda d,a: f'v_exp_f32 {V(d)}, {V(a)}'
    rd=lambda d,a,off: f'ds_read_b128 {V(d,4)}, {V(a)} offset:{off}'
    seq=GO+QO+KO
    resq=[o for o in seq if o in RES]
    pre=[M+8,M+16,M+24]+[T+8*i for i in range(4)]
    preops=resq[:7]; stream=resq[7:]
    def idle_l():
        for o,r in zip(preops,pre): p(ldres(o,r))
    def idle_v():
        for i in (0,1,2,3,8,9,10,11): p(f'v_mov_b64 {V(ACC+2*i,2)}, 0')
    p(f'{L}:')
    if P['idlefirst'][w]: idle_l()
    idle_v()
    if P['total']: p('s_memtime s[48:49]\ns_memrealtime s[50:51]')
    p(f'{L}_top:')
    qp=poll_issue(M,aMPL)
    hB=P['gapB'][w]>=0
    for i in (4,5,6,7): p(f'v_mov_b64 {V(ACC+2*i,2)}, 0')
    p(f's_mov_b32 m0, s42')
    delay(max(0,P['dB'][w]-36))
    p(qp)
    if hB: delay(P['gapB'][w]); p(qp)
    if not P['idlefirst'][w]: idle_l()
    stamp('Bissued')
    p(f's_waitcnt vmcnt({2 if hB else 0})')
    p(chk(M))
    p(f's_cbranch_vccnz {L}_b0\n{L}_b0_ok:\ns_waitcnt lgkmcnt(0)')
    tail.append(f'{L}_b0:\n{qp}\n{cnt(0)}\ns_sub_u32 s41, s41, 1\ns_cbranch_scc1 {L}_b0_dead\ns_waitcnt vmcnt({2 if hB else 0})\n{chk(M)}\ns_cbranch_vccnz {L}_b0\ns_branch {L}_b0_ok\n{L}_b0_dead:\ns_mov_b32 s41, 0\ns_branch {L}_b0_ok')
    stamp('T0')
    if P.get('series'): p('s_memtime s[56:57]')
    QOP=T; KB=T+16; VX=M
    a0,a1=acc(0,0),acc(0,1); k0,k1=acc(1,0),acc(1,1); v0_,v1_=acc(2,0),acc(2,1)
    lds=[]
    def lds_issue(tags): lds.extend(tags)
    def lds_wait(tag):
        if tag not in lds: return ''
        idx=len(lds)-1-lds[::-1].index(tag)
        n=len(lds)-1-idx
        del lds[:idx+1]
        return f's_waitcnt lgkmcnt({min(n,15)})'
    posB=P['posB'][w]
    p(f'ds_write_b128 {V(aL16)}, {V(M,4)} offset:{L_MEM+2048*w}'); lds_issue(['w'])
    si=0
    mreads=[(k,rd(M+4*k,aL16,L_MEM+2048*((w+k//2)%4)+1024*(k%2))) for k in range(2,8)]
    dma=lambda sb,off: '' if P.get('nodma') else f'global_load_lds_dwordx4 {V(aL16)}, {sb} offset:{off} {P.get("dmaflag","sc1")}'
    qpost=[add(a0,a0,a0+2),add(a0+1,a0+1,a0+3),add(a1,a1,a1+2),add(a1+1,a1+1,a1+3),
           f'v_mul_f32 {V(a0)}, s38, {V(a0)}',f'v_mul_f32 {V(a1)}, s38, {V(a1)}',f'v_mul_f32 {V(a0+1)}, s38, {V(a0+1)}',f'v_mul_f32 {V(a1+1)}, s38, {V(a1+1)}',
           cvt(a0+2,a0,a1),cvt(a0+3,a0+1,a1+1),f'ds_write2_b32 {V(aQW)}, {V(a0+2)}, {V(a0+3)} offset0:0 offset1:72']
    sched={0:[0],1:[1,2],2:[3,4],3:[5,6],4:[7,8],5:[9,10]}
    for i,o in enumerate(seq):
        if i==4: stamp('S4')
        if i==8: stamp('S8')
        if i==30: stamp('S30')
        if i==12: stamp('S12')
        if i==24: stamp('S24')
        p(lds_wait(o)); p(lds_wait(('mq',o[3])))
        p(S_(o))
        if i==0: p(f'ds_write_b128 {V(aL16)}, {V(M+4,4)} offset:{L_MEM+2048*w+1024}'); lds_issue(['w'])
        if i==posB:
            stamp('preB1')
            p(lds_wait('w')); p('s_barrier')
            stamp('B1')
        if (o in RES and loc[o]>=T and si<5) or i in (14,16,18):
            p(ldres(stream[si],loc[o] if si<5 else T+8*(si-5))); lds_issue([stream[si]]*2); si+=1
        if i>=posB and mreads:
            nrd=6 if i>=11 else (2 if i>=8 else 0)
            for k,x in mreads[:nrd]: p(x); lds_issue([('mq',k)])
            del mreads[:nrd]
        pubk='' if P.get('nopub') else f'global_store_dwordx4 {V(aL16)}, {V(TMP,4)}, s[34:35] offset:{1024*w-4096} sc1'
        pubv='' if P.get('nopub') or P.get('halfpub') else f'global_store_dwordx4 {V(aL16)}, {V(VPK,4)}, s[34:35] offset:{1024*w} sc1'
        if i==1: p(rd(TMP,aQKR,576+64*w)); lds_issue(['kf'])
        c0=posB
        if P.get('pubfirst'):
            ch={c0:['s_waitcnt vmcnt(0)',lds_wait('kf') if i==c0 else '',pubk], c0+1:[pubv], c0+2:[dma('s[30:31]',0)], c0+3:[dma('s[30:31]',1024)]}
        else:
            ch={c0:['s_waitcnt vmcnt(0)',dma('s[30:31]',0)], c0+1:[dma('s[30:31]',1024)], 19:[lds_wait('kf') if i==19 else '',pubk], 20:[pubv]}
        for x in ch.get(i,[]): p(x)
        if i==11: p(rd(VX,aL16,L_VX+2048*w)+'\n'+rd(VX+4,aL16,L_VX+2048*w+1024)); lds_issue(['vx']*2)
        if i==15: p(f's_mov_b32 m0, {L_VX+2048*w}'); p(lds_wait('vx')); p(dma('s[32:33]',0))
        if i==17: p(dma('s[32:33]',1024))
        if i==21 and P.get('series'): p(f's_waitcnt lgkmcnt(0)\nv_mov_b32 {V(TMP)}, s56\nv_mov_b32 {V(TMP+1)}, s58\ns_add_u32 s58, s58, 4\nglobal_store_dword {V(TMP+1)}, {V(TMP)}, s[4:5]')
        if i==22: p(f'v_mov_b64 {V(TMP,2)}, -1')
        if i==23: p(f'v_mov_b64 {V(TMP+2,2)}, -1')
        n=i-24
        for x in sched.get(n,[]): p(qpost[x])
        if n==6: p(rd(KB,aKX,0)+'\n'+rd(KB+4,aKX,1024))
        if n==7: p(rd(KB+8,aKX,2048)+'\n'+rd(KB+12,aKX,3072))
        if n==8: p(f'global_store_dwordx4 {V(aINB)}, {V(TMP,4)}, s[4:5] {st}\nv_xor_b32 {V(VPK)}, 0x4000, {V(aMST)}')
        if n==9: p('s_waitcnt lgkmcnt(4)\ns_barrier')
        if n==10: p(rd(QOP,aQKR,0)+'\n'+rd(QOP+4,aQKR,64))
        if n==11: p(rd(QOP+8,aQKR,128)+'\n'+rd(QOP+12,aQKR,192))
    assert si==len(stream) and not mreads
    stamp('tk')
    if P.get('dbgwait'): p('s_waitcnt vmcnt(3)'); stamp('dmadone'); p('s_waitcnt vmcnt(0)'); stamp('alldone')
    X0,X1,MT,PX=a0,a1,k1,k0
    LS,O0,O1,OP=QOP,QOP+4,QOP+8,QOP+12
    W=lambda n: f's_waitcnt lgkmcnt({n})'
    Vs=lambda i: S_(VF[i])
    Xm=lambda X,s: mf(X,KB+4*s,QOP+4*s,None if s==0 else X)
    kx1=lambda s: rd(KB+4*s,aKX,4096+1024*s)
    kr=lambda s: rd(KB+4*s,aQKR,576+64*s)
    stream2=[
     Vs(0), f'global_store_dwordx4 {V(aINB)}, {V(TMP,4)}, s[4:5] offset:1024 {st}', add(k0,k0,k0+2),
     Vs(1), W(3), add(k0+1,k0+1,k0+3),
     Xm(X0,0), add(k1,k1,k1+2), add(k1+1,k1+1,k1+3),
     Vs(2), W(2), kx1(0), cvt(k0+2,k0,k1),
     Xm(X0,1), cvt(k0+3,k0+1,k1+1), f'ds_write2_b32 {V(aQW)}, {V(k0+2)}, {V(k0+3)} offset0:144 offset1:216',
     Vs(3), W(3), kx1(1), f'v_xor_b32 {V(aINB)}, 0x40000, {V(aINB)}',
     Xm(X0,2), f'global_store_dword {V(VPK)}, {V(TMP)}, s[4:5] {st}',
     Vs(4), W(3), kx1(2),
     Xm(X0,3),
     Vs(5), W(2), kx1(3),
     Xm(X1,0), 's_barrier', ex(X0,X0),
     Vs(6), W(2), kr(0),
     Xm(X1,1), ex(X0+1,X0+1),
     Vs(7), W(2), kr(1), cvt(PX,X0,X0+1),
     Xm(X1,2), ex(X0+2,X0+2),
     Vs(8), W(2), kr(2),
     Xm(X1,3), ex(X0+3,X0+3),
     Vs(9), W(2), kr(3), cvt(PX+1,X0+2,X0+3),
     Xm(MT,0), ex(X1,X1),
     Vs(10), W(2),
     Xm(MT,1), ex(X1+1,X1+1),
     Vs(11), W(1), cvt(PX+2,X1,X1+1),
     Xm(MT,2), W(0), ex(X1+2,X1+2),
     Xm(MT,3), ex(X1+3,X1+3), add(v0_,v0_,v0_+2), cvt(PX+3,X1+2,X1+3), add(v0_+1,v0_+1,v0_+3), add(v1_,v1_,v1_+2),
     mf(LS,ONES,PX), ex(MT+2,MT),
     mf(O0,VX,PX), ex(MT+3,MT+1),
     mf(O1,VX+4,PX), cvt(PM+2,MT+2,MT+3), add(v1_+1,v1_+1,v1_+3), cvt(VPK,v0_,v0_+1),
     mf(LS,ONES,PM+2,LS), cvt(VPK+2,v1_,v1_+1), 's_cmp_eq_u32 s40, 63', f's_cbranch_scc1 {L}_fin',
     mf(O0,VPK,PM+2,O0),
     mf(O1,VPK,PM,O1),
    ]
    for x in stream2:
        p(x)
        if x==Xm(X0,0): stamp('X00')
        if x==Xm(X1,0): stamp('X10')
        if x==Xm(MT,0): stamp('MT0')
        if x==mf(LS,ONES,PX): stamp('LSx')
        if x==mf(LS,ONES,PM+2,LS): stamp('LSm')
    tail.append(f'{L}_fin:\ns_add_u32 s34, s34, {32*8192}\ns_addc_u32 s35, s35, 0\nglobal_store_dwordx4 {V(aL16)}, {V(KB+4*w,4)}, s[34:35] offset:{1024*w-4096} sc1\nglobal_store_dwordx4 {V(aL16)}, {V(VPK,4)}, s[34:35] offset:{1024*w} sc1\ns_branch L_rec_done')
    stamp('join2')
    p(f'{L}_join:')
    p(f'v_rcp_f32 {V(LS+1)}, {V(LS)}')
    p(f'v_max_f32 {V(LS+2)}, {V(LS)}, {V(LS+1)}\nv_cmp_nge_f32 vcc, s39, {V(LS+2)}')
    pk=lambda r: f'v_pk_mul_f32 {V(r,2)}, {V(r,2)}, {V(LS,2)} op_sel:[0,1] op_sel_hi:[1,1]'
    p(pk(O0)); p(pk(O0+2))
    p(f's_cbranch_vccnz {L}_slow\n{L}_join2:')
    p(pk(O1)); p(pk(O1+2))
    for r in range(4): p(cvt(OP+r,O0+r,O1+r))
    p(f'ds_write_b128 {V(aOW)}, {V(OP,4)} offset:{L_O}')
    stamp('owrite')
    WA=M
    for i in range(12): p(f'v_mov_b64 {V(WA+2*i,2)}, 0')
    p('s_waitcnt lgkmcnt(0)')
    stamp('preB4')
    p('s_barrier')
    OA=KB
    p(rd(OA,aOR0,L_O)+'\n'+rd(OA+4,aOR1,L_O))
    PA=M; RD=ACC+12; SEL=ACC+8; PK=ACC
    p(rd(SEL,aL16,L_SEL))
    for i in range(12,16): p(f'v_mov_b64 {V(WA+2*i,2)}, 0')
    p(f's_add_u32 s30, s30, {SEGB}\ns_addc_u32 s31, s31, 0\ns_add_u32 s32, s32, {SEGB}\ns_addc_u32 s33, s33, 0')
    sl=Prog()
    sl(f'{L}_slow:\n{cnt(3)}\ns_nop 7')
    for s in range(4): sl(rd(QOP+4*s,aQKR,64*s))
    for tx,X in ((0,X0),(1,X1)):
        for s in range(4): sl(rd(KB+4*s,aKX,4096*tx+1024*s))
        sl('s_waitcnt lgkmcnt(0)')
        for s in range(4): sl(Xm(X,s))
    mx,t1=TMP,TMP+1
    sl(f'v_max3_f32 {V(mx)}, {V(X0)}, {V(X0+1)}, {V(X0+2)}\nv_max3_f32 {V(t1)}, {V(X0+3)}, {V(X1)}, {V(X1+1)}')
    sl(f'v_max3_f32 {V(mx)}, {V(mx)}, {V(X1+2)}, {V(X1+3)}\nv_max3_f32 {V(t1)}, {V(t1)}, {V(MT)}, {V(MT+1)}\nv_max_f32 {V(mx)}, {V(mx)}, {V(t1)}')
    xgroup(sl,'v_max_f32',V(mx),V(t1))
    for r in [X0+i for i in range(8)]+[MT,MT+1]: sl(f'v_sub_f32 {V(r)}, {V(r)}, {V(mx)}')
    for r in [X0+i for i in range(8)]+[MT,MT+1]: sl(ex(r,r))
    for i in range(4): sl(cvt(PX+i,X0+2*i,X0+2*i+1))
    sl(cvt(PM+2,MT,MT+1))
    for x in (mf(LS,ONES,PX),mf(O0,VX,PX),mf(O1,VX+4,PX),mf(LS,ONES,PM+2,LS),mf(O0,VPK,PM+2,O0),mf(O1,VPK,PM,O1)): sl(x)
    sl(f's_nop 7\nv_rcp_f32 {V(LS+1)}, {V(LS)}\ns_nop 0'); sl(pk(O0)); sl(pk(O0+2)); sl(f's_branch {L}_join2')
    tail.append('\n'.join(sl.lines))
    def WS(ph,b,k): return f'v_smfmac_f32_16x16x64_bf16 {V(WA+8*ph+4*b,4)}, {V(OA+4*k,4)}, {R(loc[("o",ph,b,k)],8)}, {V(IDX)}'
    def post(ph):
        a,b=WA+8*ph,WA+8*ph+4
        return [add(a,a,a+2),add(a+1,a+1,a+3),add(b,b,b+2),add(b+1,b+1,b+3),cvt(PK+2*ph,a,b),cvt(PK+2*ph+1,a+1,b+1),
                f'global_store_dwordx2 {V(aPST)}, {V(PK+2*ph,2)}, {S(20+2*ph,2)} {st}']
    wseq=[(ph,b,k) for ph in range(4) for (b,k) in ((0,0),(0,1),(1,0),(1,1))]
    wseq[0:4]=[(0,0,0),(0,1,0),(0,0,1),(0,1,1)]
    P0,P1,P2,P3=[post(i) for i in range(4)]
    wf={4:[P0[0]],5:[P0[1],P0[2]],6:[P0[3],P0[4]],7:[P0[5]],8:[P0[6],P1[0]],9:[P1[1],P1[2]],10:[P1[3],P1[4]],11:[P1[5]],12:[P1[6],P2[0]],13:[P2[1],P2[2]],14:[P2[3],P2[4]],15:[P2[5],P2[6],P3[0],P3[1]]}
    p('s_waitcnt lgkmcnt(2)')
    for n,(ph,b,k) in enumerate(wseq):
        if n==2: p('s_waitcnt lgkmcnt(1)')
        p(WS(ph,b,k))
        if n==0: stamp('Wo0')
        if n==8: stamp('Wo8')
        if n==15: stamp('Wo15')
        for x in wf.get(n,[]): p(x)
    b3=WA+28
    p(f'v_pk_add_f32 {V(b3,2)}, {V(b3,2)}, {V(b3+2,2)}')
    for x in P3[4:]: p(x)
    stamp('Woend')
    pa=poll_issue(PA,aINB)
    red=mf(RD,SEL,PA)+'\n'+mf(RD,SEL,PA+4,RD)
    chores=[f'v_mov_b64 {V(ACC+2*i,2)}, 0' for i in (0,1,2,3,8,9,10,11)]+[f's_add_u32 s34, s34, {32*8192}','s_addc_u32 s35, s35, 0','s_add_u32 s40, s40, 1','s_xor_b32 s42, s42, 8192',
        f'v_add_u32 {V(TMP)}, 0x2000, {V(aMPL)}',f'v_bfi_b32 {V(aMPL)}, s43, {V(TMP)}, {V(aMPL)}',f'v_xor_b32 {V(aPST)}, 0x40000, {V(aPST)}',f'v_xor_b32 {V(aKX)}, 8192, {V(aKX)}']
    def spend(c):
        n=c//4
        while n>0 and chores: p(chores.pop(0)); n-=1
        p.nops(n)
    if P['idlefirst'][w]: idle_l()
    spend(P['dA'][w])
    p(pa)
    hA=P['gapA'][w]>=0
    if hA:
        spend(P['gapA'][w]); p(pa)
    spend(4*len(chores))
    p(f's_waitcnt vmcnt({2 if hA else 0}) lgkmcnt({14 if P["idlefirst"][w] else 0})')
    p(f'{L}_a:')
    stamp('Aret')
    p(red)
    p(f'v_cmp_u_f32 vcc, {V(RD+2)}, {V(RD+3)}')
    dpp=[f'v_add_f32_dpp {V(RD+r)}, {V(RD+r)}, {V(RD+r)} row_ror:{n} row_mask:0xf bank_mask:0xf' for n in (4,8) for r in range(2)]
    p(dpp[0]); p(dpp[1])
    p(f's_cbranch_vccnz {L}_a_fail\n{L}_a_ok:')
    p(dpp[2]); p(dpp[3])
    tail.append(f'{L}_a_fail:\ns_sub_u32 s41, s41, 1\ns_cbranch_scc1 {L}_a_dead\n'+chk(PA)+f'\ns_cbranch_vccz {L}_a_now\n{pa}\n{cnt(2)}\ns_waitcnt vmcnt({2 if hA else 0})\ns_branch {L}_a\n{L}_a_now:\n{red}\ns_nop 7\n{dpp[0]}\n{dpp[1]}\ns_branch {L}_a_ok\n{L}_a_dead:\ns_mov_b32 s41, 0\ns_branch {L}_a_ok')
    p('s_mov_b64 exec, s[44:45]')
    p(cvt(RD,RD,RD+1))
    p(f'global_store_dword {V(aMST)}, {V(RD)}, s[4:5] {st}')
    p('s_mov_b64 exec, -1')
    stamp('pub')
    p(f'v_add_u32 {V(TMP)}, 0x2000, {V(aMST)}\nv_bfi_b32 {V(aMST)}, s43, {V(TMP)}, {V(aMST)}')
    p(f's_branch {L}_top')
    for t in tail: p(t)
```

```python
import sys; sys.path.insert(0,'gen')
from build import *
import k_rec4
from k_attn import gen_attn
from k_out import gen_out
from k_moe import gen_moea, gen_moeb
def mk(out, **kw):
    ks=[('prep_kernel',128,1024,gen_prep),('moea_kernel',28,65536,gen_moea),('moeb_kernel',8,65536,gen_moeb),('qkv_kernel',256,163840,gen_qkv),('rec_kernel',256,163840,lambda p:k_rec4.gen_rec(p,**kw)),('attn_kernel',256,0,gen_attn),('out_kernel',256,131072,gen_out)]
    build(ks,out)
if __name__=='__main__': mk(f'cdna_kernels/{NAME}.s')
```
